```python
import torch

def _softmax(x, axis=-1):
    return torch.softmax(x, dim=axis)
def _gelu(x):
    return torch.nn.functional.gelu(x, approximate="tanh")
def _silu(x):
    return torch.nn.functional.silu(x)
def _sigmoid(x):
    return torch.sigmoid(x)
def _layernorm(x, axis=-1, eps=1e-5):
    m = x.mean(dim=axis, keepdim=True)
    v = x.var(dim=axis, keepdim=True, unbiased=False)
    return (x - m) / torch.sqrt(v + eps)
def _scatter_add(tgt, idx, src, axis=0):
    return tgt.clone().index_add_(axis, idx, src)
def _segment_sum(src, seg, n):
    out = torch.zeros((n,) + src.shape[1:], dtype=src.dtype)
    return out.index_add_(0, seg, src)
def _pad(x, pw):
    flat = tuple(v for pair in reversed(pw) for v in pair)
    return torch.nn.functional.pad(x, flat)

kernel_name = 'gather_scatter__cheap_equivariant_egnn__graph'

def setup_inputs():

    _w = (lambda a: (lambda t: t.to(torch.bfloat16) if t.is_floating_point() else t)(torch.as_tensor(a)))
    N, deg, D, De = 50000, 16, 64, max(0, 1)
    E = N * deg
    return {
        "h": _w((lambda *s: torch.randn(*s, dtype=torch.bfloat16) * 0.2)(N, D)),
        "pos": _w((lambda *s: torch.randn(*s, dtype=torch.bfloat16) * 0.4)(N, 3)),
        "e_attr": _w((lambda *s: torch.randn(*s, dtype=torch.bfloat16) * 0.4)(E, De)),
        "src": _w((lambda lo, hi, *s: torch.randint(lo, hi, s))(0, N, E).to(torch.int64)),
        "dst": _w((lambda lo, hi, *s: torch.randint(lo, hi, s))(0, N, E).to(torch.int64)),
        "w_e": _w(0.1 * (lambda *s: torch.randn(*s, dtype=torch.bfloat16) * 0.4)(2 * D + 1 + De, D)),
        "w_x": _w(0.1 * (lambda *s: torch.randn(*s, dtype=torch.bfloat16) * 0.2)(D, 1)),
        "w_h": _w(0.1 * (lambda *s: torch.randn(*s, dtype=torch.bfloat16) * 0.2)(2 * D, D)),
    }

def reference(h, pos, e_attr, src, dst, w_e, w_x, w_h):
    N, D = h.shape[0], h.shape[1]
    diff = pos[dst] - pos[src]
    dist2 = torch.sum(diff * diff, axis=-1, keepdims=True)
    e_in = torch.concatenate([h[dst], h[src], dist2, e_attr], axis=-1)
    m_ij = _silu(e_in @ w_e)
    coord_scale = m_ij @ w_x
    pos_new = pos + _segment_sum(diff * coord_scale, dst, N)
    m_i = _segment_sum(m_ij, dst, N)
    h_new = h + _silu(torch.concatenate([h, m_i], axis=-1) @ w_h)
    return h_new, pos_new
```

```python
N=50000; E=800000; NB=256; BN=196; CH=3128; NCH=256
REC_OFF=0
REC_BYTES=NCH*CH*8
TAB_OFF=0x620000
TAB_BYTES=NB*NCH*4
POS8_OFF=0x660000
POS8_BYTES=50176*8
IMG_OFF=0x6C4000
IMG_FW2=0; IMG_FW1=8192; IMG_FWH1=16384; IMG_FWH2=24576; IMG_FWX=32768; IMG_WEXT=36864
IMG_BYTES=37888
WS_USED=IMG_OFF+IMG_BYTES
NEG_LOG2E=0xBFB8AA3B
NEG_LN2=0xBF317218
KNAME='gather_scatter__cheap_equivariant_egnn__graph'

class Asm:
    def __init__(self):
        self.lines=[]
        self.uid=0
    def __call__(self, s):
        for ln in s.split('\n'):
            ln=ln.strip()
            if ln: self.lines.append(('' if ln.endswith(':') else '    ')+ln)
    def label(self, base):
        self.uid+=1
        return f'{base}_{self.uid}'
    def text(self): return '\n'.join(self.lines)+'\n'

def srd(a, s, base_lo, base_hi, off, size):
    if off:
        a(f's_add_u32 s{s}, s{base_lo}, {off}')
        a(f's_addc_u32 s{s+1}, s{base_hi}, 0')
    else:
        a(f's_mov_b32 s{s}, s{base_lo}')
        a(f's_mov_b32 s{s+1}, s{base_hi}')
    a(f's_mov_b32 s{s+2}, {size}')
    a(f's_mov_b32 s{s+3}, 0x20000')

def wave_scan(a, v):
    for m in ('row_shr:1','row_shr:2','row_shr:4','row_shr:8'):
        a('s_nop 1')
        a(f'v_add_u32_dpp v{v}, v{v}, v{v} {m} row_mask:0xf bank_mask:0xf bound_ctrl:0')
    a('s_nop 1')
    a(f'v_add_u32_dpp v{v}, v{v}, v{v} row_bcast:15 row_mask:0xa bank_mask:0xf')
    a('s_nop 1')
    a(f'v_add_u32_dpp v{v}, v{v}, v{v} row_bcast:31 row_mask:0xc bank_mask:0xf')
```

```python
from gen_common import *

K1_LDS = 2048 + CH*8
K1_GRID = 260

STAMP=False
STAMP_OFF=0x800000
def stamp(a,i):
    if STAMP: a(f's_memrealtime s[{64+2*i}:{65+2*i}]')
def stamp_out(a,n,sr,base_off):
    if not STAMP: return
    a('s_waitcnt vmcnt(0) lgkmcnt(0)')
    a(f's_memrealtime s[{64+2*n}:{65+2*n}]')
    a('s_waitcnt lgkmcnt(0)')
    a('v_cmp_eq_u32 vcc, 0, v0')
    a('s_and_saveexec_b64 s[42:43], vcc')
    lab=a.label('st')
    a(f's_cbranch_execz {lab}')
    a(f's_mul_i32 s38, s2, 128')
    a(f's_add_u32 s38, s38, {base_off}')
    a('v_mov_b32 v1, s38')
    for i in range(n+1):
        a(f'v_mov_b32 v2, s{64+2*i}'); a(f'v_mov_b32 v3, s{65+2*i}')
        a(f'buffer_store_dwordx2 v[2:3], v1, s[{sr}:{sr+3}], 0 offen offset:{8*i}')
    a(f'{lab}:')

def gen_k1(a, name='egnn_sort_kernel'):
    a(f'.globl {name}')
    a('.p2align 8')
    a(f'.type {name},@function')
    a(f'{name}:')
    a(f's_cmp_ge_u32 s2, {K1_GRID}')
    a('s_cbranch_scc1 K1_end')
    a('s_load_dwordx8 s[8:15], s[0:1], 8')
    a('s_load_dwordx2 s[16:17], s[0:1], 80')
    a('s_cmp_ge_u32 s2, 256')
    a('s_cbranch_scc1 K1_wprep')
    stamp(a,0)
    a('v_lshlrev_b32 v1, 2, v0')
    a('v_mov_b32 v2, 0')
    a('v_cmp_gt_u32 vcc, 256, v0')
    a('s_and_saveexec_b64 s[40:41], vcc')
    a('s_cbranch_execz K1_z1')
    a('ds_write_b32 v1, v2')
    a('K1_z1:')
    a('s_mov_b64 exec, s[40:41]')
    a(f's_mul_i32 s18, s2, {CH}')
    a(f's_sub_u32 s19, {E}, s18')
    a(f's_min_u32 s19, s19, {CH}')
    a('s_lshr_b32 s19, s19, 2')
    a(f's_mul_i32 s33, s2, {BN}')
    a('v_lshlrev_b32 v3, 2, v0')
    a('v_add_u32 v3, s18, v3')
    a('v_lshlrev_b32 v4, 2, v3')
    a('v_lshlrev_b32 v5, 1, v3')
    a('v_subrev_u32 v6, 782, v0')
    a('v_add_u32 v7, s33, v6')
    a('v_mul_u32_u24 v8, 6, v7')
    a('v_lshlrev_b32 v9, 3, v7')
    a('s_waitcnt lgkmcnt(0)')
    srd(a, 20, 14, 15, 0, E*4)
    srd(a, 24, 12, 13, 0, E*4)
    srd(a, 28, 10, 11, 0, E*2)
    srd(a, 36, 8, 9, 0, N*6)
    srd(a, 44, 16, 17, 0, WS_USED if not STAMP else 0x1000000)
    a('v_cmp_gt_u32 vcc, s19, v0')
    a('s_and_saveexec_b64 s[42:43], vcc')
    a('s_mov_b64 s[48:49], exec')
    a('s_cbranch_execz K1_l1')
    a('buffer_load_dwordx4 v[12:15], v4, s[20:23], 0 offen')
    a('buffer_load_dwordx4 v[16:19], v4, s[24:27], 0 offen')
    a('buffer_load_dwordx2 v[20:21], v5, s[28:31], 0 offen')
    a('K1_l1:')
    a('s_mov_b64 exec, s[42:43]')
    a(f'v_cmp_gt_u32 vcc, {BN}, v6')
    a(f's_mov_b32 s34, {N}')
    a('v_cmp_gt_u32 s[50:51], s34, v7')
    a('s_and_b64 s[50:51], s[50:51], vcc')
    a('s_and_saveexec_b64 s[42:43], s[50:51]')
    a('s_cbranch_execz K1_l2')
    a('buffer_load_ushort v22, v8, s[36:39], 0 offen')
    a('buffer_load_ushort v23, v8, s[36:39], 0 offen offset:2')
    a('buffer_load_ushort v24, v8, s[36:39], 0 offen offset:4')
    a('s_waitcnt vmcnt(0)')
    a('v_lshl_or_b32 v22, v23, 16, v22')
    a('v_mov_b32 v23, v24')
    a(f'v_add_u32 v9, {POS8_OFF}, v9')
    a('buffer_store_dwordx2 v[22:23], v9, s[44:47], 0 offen')
    a('K1_l2:')
    a('s_mov_b64 exec, s[42:43]')
    a('s_waitcnt lgkmcnt(0)')
    a('s_barrier')
    a('s_mov_b64 exec, s[48:49]')
    a('s_cbranch_execz K1_r1')
    a('s_mov_b32 s35, 85599')
    a('v_mov_b32 v25, 1')
    a('s_waitcnt vmcnt(0)')
    stamp(a,1)
    for i in range(4):
        d=12+i
        a(f'v_mul_u32_u24 v{26+i}, s35, v{d}')
        a(f'v_lshrrev_b32 v{26+i}, 24, v{26+i}')
        a(f'v_lshlrev_b32 v{30+i}, 2, v{26+i}')
        a(f'ds_add_rtn_u32 v{34+i}, v{30+i}, v25')
    a('s_mov_b32 s36, 0x3F800000')
    a(f's_movk_i32 s37, {-BN}')
    for i in range(4):
        d=12+i
        a(f'v_mad_i32_i24 v{d}, v{26+i}, s37, v{d}')
        a(f'v_lshl_or_b32 v{d}, v{d}, 1, s36')
    a('v_lshl_or_b32 v16, v20, 16, v16')
    a('v_and_b32 v20, 0xffff0000, v20')
    a('v_or_b32 v17, v17, v20')
    a('v_lshl_or_b32 v18, v21, 16, v18')
    a('v_and_b32 v21, 0xffff0000, v21')
    a('v_or_b32 v19, v19, v21')
    a('K1_r1:')
    a('s_mov_b64 exec, -1')
    a('s_waitcnt lgkmcnt(0)')
    a('s_barrier')
    stamp(a,2)
    a('v_and_b32 v38, 63, v0')
    a('v_lshlrev_b32 v39, 4, v38')
    a('ds_read_b128 v[40:43], v39')
    a('s_waitcnt lgkmcnt(0)')
    a('v_add_u32 v44, v40, v41')
    a('v_add_u32 v45, v44, v42')
    a('v_add_u32 v46, v45, v43')
    a('v_mov_b32 v47, v46')
    wave_scan(a, 47)
    a('v_sub_u32 v48, v47, v46')
    a('v_add_u32 v49, v48, v40')
    a('v_add_u32 v50, v48, v44')
    a('v_add_u32 v51, v48, v45')
    a('ds_write_b128 v39, v[48:51] offset:1024')
    a('v_cmp_gt_u32 vcc, 64, v0')
    a('s_and_saveexec_b64 s[42:43], vcc')
    a('s_cbranch_execz K1_t1')
    a('v_lshlrev_b32 v52, 12, v38')
    a('s_lshl_b32 s38, s2, 2')
    a(f's_add_u32 s38, s38, {TAB_OFF}')
    a('v_add_u32 v52, s38, v52')
    for i in range(4):
        a(f'v_lshl_or_b32 v{53+i}, v{40+i}, 16, v{48+i}')
        a(f'buffer_store_dword v{53+i}, v52, s[44:47], 0 offen offset:{1024*i}')
    a('K1_t1:')
    a('s_mov_b64 exec, s[48:49]')
    a('s_cbranch_execz K1_p1')
    for i in range(4):
        a(f'ds_read_b32 v{26+i}, v{30+i} offset:1024')
    for i in range(4):
        a(f's_waitcnt lgkmcnt({3-i})')
        a(f'v_add_u32 v{26+i}, v{26+i}, v{34+i}')
        a(f'v_lshlrev_b32 v{26+i}, 3, v{26+i}')
        a(f'v_mov_b32 v{58+2*i}, v{16+i}')
        a(f'v_mov_b32 v{59+2*i}, v{12+i}')
        a(f'ds_write_b64 v{26+i}, v[{58+2*i}:{59+2*i}] offset:2048')
    a('K1_p1:')
    a('s_mov_b64 exec, -1')
    a('s_waitcnt lgkmcnt(0)')
    a('s_barrier')
    stamp(a,3)
    a('v_lshlrev_b32 v4, 4, v0')
    a('ds_read_b128 v[40:43], v4 offset:2048')
    a(f's_mul_i32 s38, s2, {CH*8}')
    a(f's_add_u32 s38, s38, {REC_OFF}')
    a('v_add_u32 v5, s38, v4')
    a(f'v_cmp_gt_u32 vcc, {CH*8//16-1024}, v0')
    a('s_and_saveexec_b64 s[42:43], vcc')
    a('s_cbranch_execz K1_c1')
    a('ds_read_b128 v[44:47], v4 offset:18432')
    a('v_add_u32 v6, 16384, v5')
    a('s_waitcnt lgkmcnt(0)')
    a('buffer_store_dwordx4 v[44:47], v6, s[44:47], 0 offen')
    a('K1_c1:')
    a('s_mov_b64 exec, s[42:43]')
    a('s_waitcnt lgkmcnt(0)')
    a('buffer_store_dwordx4 v[40:43], v5, s[44:47], 0 offen')
    stamp(a,4)
    stamp_out(a,5,44,STAMP_OFF)
    a('s_endpgm')
    a('K1_wprep:')
    a('s_load_dwordx4 s[20:23], s[0:1], 40')
    a('s_load_dwordx2 s[24:25], s[0:1], 56')
    a('s_waitcnt lgkmcnt(0)')
    srd(a, 28, 20, 21, 0, 130*128)
    srd(a, 32, 24, 25, 0, 128*128)
    srd(a, 36, 22, 23, 0, 128)
    srd(a, 44, 16, 17, 0, WS_USED)
    a('v_lshrrev_b32 v1, 7, v0')
    a('v_bfe_u32 v2, v0, 1, 6')
    a('v_and_b32 v3, 3, v1')
    a('v_lshrrev_b32 v4, 2, v1')
    a('v_lshrrev_b32 v5, 5, v2')
    a('v_and_b32 v6, 31, v2')
    a('v_and_b32 v7, 1, v0')
    a('v_lshl_add_u32 v8, v4, 5, v6')
    a('v_lshlrev_b32 v8, 1, v8')
    a('v_lshlrev_b32 v9, 4, v3')
    a('v_lshl_add_u32 v10, v5, 3, v9')
    a('v_lshl_add_u32 v10, v7, 2, v10')
    a('v_lshl_add_u32 v11, v7, 3, v9')
    a('v_lshl_add_u32 v11, v5, 2, v11')
    a('v_lshlrev_b32 v12, 3, v0')
    a('s_cmp_eq_u32 s2, 256'); a('s_cbranch_scc1 K1_w2')
    a('s_cmp_eq_u32 s2, 257'); a('s_cbranch_scc1 K1_w1')
    a('s_cmp_eq_u32 s2, 258'); a('s_cbranch_scc1 K1_wh1')
    def load4(rowreg, rowadd, sr):
        a(f'v_add_u32 v13, {rowadd}, v{rowreg}')
        a('v_lshl_add_u32 v13, v13, 7, v8')
        for j in range(4):
            a(f'buffer_load_ushort v{14+j}, v13, s[{sr}:{sr+3}], 0 offen offset:{128*j}')
        a('s_waitcnt vmcnt(0)')
    def store2(off):
        a('v_lshl_or_b32 v18, v15, 16, v14')
        a('v_lshl_or_b32 v19, v17, 16, v16')
        a(f'v_add_u32 v12, {IMG_OFF+off}, v12')
        a('buffer_store_dwordx2 v[18:19], v12, s[44:47], 0 offen')
    load4(10, 64, 32); store2(IMG_FWH2); a('s_endpgm')
    a('K1_wh1:')
    load4(11, 0, 32); store2(IMG_FWH1); a('s_endpgm')
    a('K1_w2:')
    load4(10, 64, 28)
    a(f's_mov_b32 s40, {NEG_LOG2E}')
    for j in range(4):
        a(f'v_lshlrev_b32 v{14+j}, 16, v{14+j}')
        a(f'v_mul_f32 v{14+j}, s40, v{14+j}')
    a('v_cvt_pk_bf16_f32 v18, v14, v15')
    a('v_cvt_pk_bf16_f32 v19, v16, v17')
    a(f'v_add_u32 v12, {IMG_OFF+IMG_FW2}, v12')
    a('buffer_store_dwordx2 v[18:19], v12, s[44:47], 0 offen')
    a('s_endpgm')
    a('K1_w1:')
    load4(11, 0, 28); store2(IMG_FW1)
    a('v_lshrrev_b32 v20, 8, v0')
    a('v_and_b32 v21, 3, v0')
    a('v_lshl_add_u32 v20, v20, 2, v21')
    a('v_lshrrev_b32 v21, 3, v20')
    a('v_and_b32 v22, 7, v20')
    a('v_and_b32 v23, 1, v22')
    a('v_lshrrev_b32 v22, 1, v22')
    a('v_bfe_u32 v24, v0, 7, 1')
    a('v_lshlrev_b32 v25, 5, v21')
    a('v_lshl_add_u32 v25, v23, 1, v25')
    a('v_lshl_add_u32 v25, v22, 3, v25')
    a('v_lshl_add_u32 v25, v24, 2, v25')
    a('v_lshlrev_b32 v25, 1, v25')
    a('buffer_load_dword v26, v25, s[36:39], 0 offen')
    a('v_lshlrev_b32 v27, 2, v0')
    a(f'v_add_u32 v27, {IMG_OFF+IMG_FWX}, v27')
    a('v_lshrrev_b32 v28, 5, v0')
    a('v_and_b32 v29, 31, v0')
    a('v_lshlrev_b32 v30, 2, v29')
    a('v_add_u32 v31, 128, v28')
    a('v_lshl_add_u32 v31, v31, 7, v30')
    a('buffer_load_dword v32, v31, s[28:31], 0 offen')
    a('s_waitcnt vmcnt(0)')
    a('buffer_store_dword v26, v27, s[44:47], 0 offen')
    a(f's_mov_b32 s40, {NEG_LOG2E}')
    a('v_lshlrev_b32 v33, 16, v32')
    a('v_and_b32 v34, 0xffff0000, v32')
    a('v_mul_f32 v33, s40, v33')
    a('v_mul_f32 v34, s40, v34')
    a('v_cvt_pk_bf16_f32 v33, v33, v34')
    a('v_lshlrev_b32 v35, 2, v0')
    a(f'v_add_u32 v35, {IMG_OFF+IMG_WEXT}, v35')
    a('v_cmp_gt_u32 vcc, 256, v0')
    a('s_and_saveexec_b64 s[42:43], vcc')
    a('s_cbranch_execz K1_end')
    a('buffer_store_dword v33, v35, s[44:47], 0 offen')
    a('K1_end:')
    a('s_endpgm')

def k1_desc(name='egnn_sort_kernel'):
    return f'''.amdhsa_kernel {name}
  .amdhsa_next_free_vgpr 72
  .amdhsa_next_free_sgpr 96
  .amdhsa_accum_offset 72
  .amdhsa_group_segment_fixed_size 0
  .amdhsa_kernarg_size 88
  .amdhsa_user_sgpr_count 2
  .amdhsa_user_sgpr_kernarg_segment_ptr 1
  .amdhsa_system_sgpr_workgroup_id_x 1
.end_amdhsa_kernel
'''
if __name__=='__main__':
    import sys
    if len(sys.argv)>1 and sys.argv[1]=='stamp': STAMP=True
    a=Asm()
    gen_k1(a)
    hdr=f'; @launch kernel=egnn_sort_kernel grid=({K1_GRID},1,1) block=(1024,1,1) lds={K1_LDS}\n'
    hdr+='.amdgcn_target "amdgcn-amd-amdhsa--gfx950"\n.text\n'
    txt=hdr+a.text()+'.section .rodata,"a"\n.p2align 6\n'+k1_desc()
    open('k1only.s','w').write(txt)
```

```python
from gen_common import *
import gen_k1

L_STG=0; L_HIST=0; L_OFFS=1024; L_FLAG=2048
L_STILE=32768; STILE_SZ=2560; SROW=80
L_POSO=53248
L_REC=55040
CAP=3584
L_ATAB=83968
L_WEXT=112640
L_MI=113664
L_PACC=142336
K2_LDS=145920
assert L_REC+(CAP+32)*8==L_ATAB

V_L=1
V_XA=2; V_CO0=6; V_CO1=7; V_SRCA=8; V_RECA=9; V_SB=10; V_SBW=11; V_XEA=12; V_TRA=13
V_WEA=14; V_M128=15; V_MIA=16; V_PA=17; V_INFO=18; V_ZERO=19
V_TMP=20
V_FW2=32; V_FWX=64; V_WE=80; V_X=88; V_XE=104; V_ST=108; V_PRE=116; V_OUT=148; V_T=180; V_MP=196
V_RW=212; V_PG=214; V_PD=216; V_VA=218; V_VB=219; V_W2A=220; V_W2B=221; V_NLA=222; V_NLB=223
V_P=224
V_HOP=232
S_H=4; S_WS=8; S_OUT=12
S_W=16; S_TOT=17; S_J0=18; S_NT=19; S_TI=20; S_INFO=21; S_FIRST=22; S_LAST=23; S_N0=24; S_HAVE=25; S_NEW=26; S_CAND=27
S_T0=28; S_T1=29; S_HI=30; S_FLM=32; S_SAVE=34; S_POS8=36; S_NN=37; S_NB=38; S_T2=39
S_MASK=40
S_T3=72; S_T4=73; S_MSK2=74
STAMP=False
STAMP_OFF=0x900000
def stamp(a,i):
    if STAMP: a(f's_memrealtime s[{80+2*i}:{81+2*i}]')

def q(base,i,n=4): return f'v[{base+n*i}:{base+n*i+n-1}]'
def vr(b,n): return f'v[{b}:{b+n-1}]'

def silu_block(a, P, T, MP, nregs=16):
    for i in range(nregs): a(f'v_exp_f32 v{T+i}, v{P+i}')
    for i in range(0,nregs,2): a(f'v_pk_add_f32 {vr(T+i,2)}, {vr(T+i,2)}, 1.0 op_sel_hi:[1,0]')
    for i in range(nregs): a(f'v_rcp_f32 v{T+i}, v{T+i}')
    for i in range(0,nregs,2): a(f'v_pk_mul_f32 {vr(T+i,2)}, {vr(T+i,2)}, {vr(P+i,2)}')
    for i in range(0,nregs,2): a(f'v_cvt_pk_bf16_f32 v{MP+i//2}, v{T+i}, v{T+i+1}')

def flush(a):
    a('s_nop 7'); a('s_nop 7')
    FP=V_MP
    for b in range(2):
        for qq in range(8):
            a(f'v_cvt_pk_bf16_f32 v{FP+8*b+qq}, v{V_OUT+16*b+2*qq}, v{V_OUT+16*b+2*qq+1}')
    a(f's_lshl_b32 s{S_T0}, s{S_N0}, 6')
    a(f'v_add_u32 v{V_TMP}, s{S_T0}, v{V_MIA}')
    a(f's_lshl_b32 s{S_T0}, s{S_N0}, 3')
    a(f'v_add_u32 v{V_TMP+1}, s{S_T0}, v{V_PA}')
    a(f's_mov_b64 exec, s[{S_FLM}:{S_FLM+1}]')
    for b in range(2):
        for qq in range(8):
            off=64*b+4*(qq&1)+16*(qq>>1)
            a(f'ds_pk_add_bf16 v{V_TMP}, v{FP+8*b+qq} offset:{off}')
    a('s_mov_b64 exec, -1')
    for u in range(16):
        acc=V_TMP+2+(u&3)
        if u<4: a(f'v_dot2_f32_bf16 v{acc}, v{FP+u}, v{V_FWX+u}, 0')
        else:   a(f'v_dot2_f32_bf16 v{acc}, v{FP+u}, v{V_FWX+u}, v{acc}')
    a('s_nop 2')
    a(f'v_add_f32 v{V_TMP+2}, v{V_TMP+2}, v{V_TMP+3}')
    a(f'v_add_f32 v{V_TMP+4}, v{V_TMP+4}, v{V_TMP+5}')
    a(f'v_add_f32 v{V_TMP+2}, v{V_TMP+2}, v{V_TMP+4}')
    a(f'ds_add_f32 v{V_TMP+1}, v{V_TMP+2}')

def dma_issue(a):
    for i in range(4):
        co=V_CO0 if (i&1)==0 else V_CO1
        a(f'v_lshl_add_u32 v{V_TMP+6+i}, v{V_TMP+6+i}, 7, v{co}')
    for i in range(4):
        if i==0: a(f's_mov_b32 m0, s{S_T3}')
        else:    a(f's_add_u32 m0, m0, 1024')
        a('s_nop 0')
        a(f'buffer_load_dwordx4 v{V_TMP+6+i}, s[{S_H}:{S_H+3}], 0 offen lds')

def src_reads(a):
    for i in range(4):
        a(f'ds_read_u16 v{V_TMP+6+i}, v{V_SRCA} offset:{64*i}')
    a(f'v_add_u32 v{V_SRCA}, 256, v{V_SRCA}')

def prep_p1(a):
    a(f'ds_read_b64 {vr(V_RW,2)}, v{V_RECA}')
    a(f'v_add_u32 v{V_RECA}, 512, v{V_RECA}')
    a('s_waitcnt lgkmcnt(0)')
    a(f'v_lshlrev_b32_sdwa v{V_P}, 3, v{V_RW} dst_sel:DWORD dst_unused:UNUSED_PAD src0_sel:DWORD src1_sel:WORD_0')
    a(f'buffer_load_dwordx2 {vr(V_PG,2)}, v{V_P}, s[{S_WS}:{S_WS+3}], s{S_POS8} offen')
    a(f'v_lshlrev_b32_sdwa v{V_P+1}, 2, v{V_RW+1} dst_sel:DWORD dst_unused:UNUSED_PAD src0_sel:DWORD src1_sel:WORD_0')
    a(f'ds_read_b64 {vr(V_PD,2)}, v{V_P+1} offset:{L_POSO}')

def prep_p2(a):
    P=V_P
    a(f'v_lshlrev_b32 v{P}, 16, v{V_PG}')
    a(f'v_and_b32 v{P+1}, 0xffff0000, v{V_PG}')
    a(f'v_lshlrev_b32 v{P+2}, 16, v{V_PD}')
    a(f'v_and_b32 v{P+3}, 0xffff0000, v{V_PD}')
    a(f'v_lshlrev_b32 v{P+4}, 16, v{V_PG+1}')
    a(f'v_lshlrev_b32 v{P+5}, 16, v{V_PD+1}')
    a(f'v_sub_f32 v{P}, v{P+2}, v{P}')
    a(f'v_sub_f32 v{P+1}, v{P+3}, v{P+1}')
    a(f'v_sub_f32 v{P+4}, v{P+5}, v{P+4}')
    a(f'v_and_b32 v{P+2}, 0xffff0000, v{V_RW+1}')
    a(f'v_cvt_pk_bf16_f32 v{V_VA}, v{P+2}, v{P}')
    a(f'v_cvt_pk_bf16_f32 v{V_VB}, v{P+1}, v{P+4}')
    a(f'v_and_b32 v{P+3}, 0xffff0000, v{V_VA}')
    a(f'v_mul_f32 v{P+3}, v{P+3}, v{P+3}')
    a(f'v_dot2_f32_bf16 v{P+3}, v{V_VB}, v{V_VB}, v{P+3}')
    a(f'v_mov_b32 v{V_NLA}, v{V_RW+1}')
    a(f'v_mov_b32 v{V_NLB}, v{V_RW+1}')
    a('s_nop 0')
    a(f'v_cvt_pk_bf16_f32 v{V_W2B}, v{P+3}, v{P+3}')
    a(f's_mov_b32 s{S_T0}, 0xffff')
    a(f'v_bfi_b32 v{V_W2B}, s{S_T0}, v{V_W2B}, v{V_RW}')
    a('s_nop 1')
    a(f'v_permlane32_swap_b32 v{V_VA}, v{V_VB}')
    a(f'v_permlane32_swap_b32 v{V_NLA}, v{V_NLB}')
    a(f'v_permlane32_swap_b32 v{V_W2A}, v{V_W2B}')

def tile(a, which):
    V = V_VA if which=='A' else V_VB
    W2 = V_W2A if which=='A' else V_W2B
    NL = V_NLA if which=='A' else V_NLB
    L=lambda s: f'K2_{which}_{s}'
    a(f's_waitcnt vmcnt({1 if which=="A" else 0})')
    for s in range(4):
        a(f'ds_read_b128 {q(V_X,s)}, v{V_XA+s}')
    src_reads(a)
    a(f'v_readlane_b32 s{S_INFO}, v{V_INFO}, s{S_TI}')
    a('s_waitcnt lgkmcnt(0)')
    dma_issue(a)
    a(f's_and_b32 s{S_FIRST}, s{S_INFO}, 0xffff')
    a(f's_lshr_b32 s{S_LAST}, s{S_INFO}, 16')
    a(f's_mov_b32 s{S_CAND}, s{S_FIRST}')
    a(f'{L("pass")}:')
    a(f's_add_u32 s{S_T0}, s{S_N0}, 16')
    a(f's_cmp_ge_u32 s{S_LAST}, s{S_T0}')
    a(f's_cselect_b32 s{S_T1}, 1, 0')
    a(f's_cmp_eq_u32 s{S_HAVE}, 0')
    a(f's_cselect_b32 s{S_T1}, 1, s{S_T1}')
    a(f's_mov_b32 s{S_NEW}, 0')
    a(f's_cmp_eq_u32 s{S_T1}, 0')
    a(f's_cbranch_scc1 {L("nowin")}')
    a(f's_cmp_eq_u32 s{S_HAVE}, 0')
    a(f's_cbranch_scc1 {L("noflush")}')
    flush(a)
    a(f'{L("noflush")}:')
    a(f's_mov_b32 s{S_N0}, s{S_CAND}')
    a(f's_mov_b32 s{S_HAVE}, 1')
    a(f's_mov_b32 s{S_NEW}, 1')
    a(f's_lshr_b32 s{S_T0}, s{S_N0}, 1')
    a(f'v_mad_u32_u24 v{V_TMP}, v{V_M128}, s{S_T0}, v{V_WEA}')
    for b in range(2):
        for aa in range(2):
            a(f'ds_read_b64_tr_b16 {vr(V_WE+4*b+2*aa,2)}, v{V_TMP} offset:{64*b+512*aa}')
    a(f'v_subrev_u32 v{V_SBW}, s{S_N0}, v{V_SB}')
    a(f'{L("nowin")}:')
    a(f'v_add_u32_sdwa v{V_TMP+10}, v{V_SBW}, v{NL} dst_sel:DWORD dst_unused:UNUSED_PAD src0_sel:DWORD src1_sel:WORD_0')
    a(f's_add_u32 s{S_T0}, s{S_N0}, 16')
    a(f's_cmp_ge_u32 s{S_LAST}, s{S_T0}')
    a(f's_cselect_b32 s{S_T1}, 1, 0')
    a(f's_cmp_lt_u32 s{S_FIRST}, s{S_N0}')
    a(f's_cselect_b32 s{S_T1}, 1, s{S_T1}')
    a(f's_mov_b64 s[{S_MSK2}:{S_MSK2+1}], -1')
    a(f's_cmp_eq_u32 s{S_T1}, 0')
    a(f's_cbranch_scc1 {L("nomask")}')
    a(f'v_sub_u32 v{V_TMP+11}, v{V_TMP+10}, v{V_SB}')
    a(f'v_cmp_gt_u32 s[{S_MSK2}:{S_MSK2+1}], 16, v{V_TMP+11}')
    a('s_nop 1')
    a(f'{L("nomask")}:')
    a(f's_mov_b64 exec, s[{S_MSK2}:{S_MSK2+1}]')
    a(f'ds_write_b16 v{V_TMP+10}, v{V}')
    a(f'ds_write_b16_d16_hi v{V_TMP+10}, v{V} offset:16')
    a('s_mov_b64 exec, -1')
    a(f'ds_read_b128 {vr(V_XE,4)}, v{V_XEA}')
    for s in range(2):
        for aa in range(2):
            a(f'ds_read_b64_tr_b16 {vr(V_ST+4*s+2*aa,2)}, v{V_TRA} offset:{(16*s+8*aa)*SROW}')
    a(f's_mov_b64 exec, s[{S_MSK2}:{S_MSK2+1}]')
    a(f'ds_write_b16 v{V_TMP+10}, v{V_ZERO}')
    a(f'ds_write_b16 v{V_TMP+10}, v{V_ZERO} offset:16')
    a('s_mov_b64 exec, -1')
    for b in range(2):
        for s in range(4):
            c = '0' if s==0 else vr(V_PRE+16*b,16)
            a(f'v_mfma_f32_32x32x16_bf16 {vr(V_PRE+16*b,16)}, {q(V_X,s)}, {q(V_FW2,4*b+s)}, {c}')
        if b==0:
            a('s_waitcnt lgkmcnt(0)')
            a(f'v_cndmask_b32 v{V_XE}, v{V_XE}, v{W2}, s[{S_HI}:{S_HI+1}]')
            a('s_nop 1')
        a(f'v_mfma_f32_32x32x16_bf16 {vr(V_PRE+16*b,16)}, {vr(V_XE,4)}, {vr(V_WE+4*b,4)}, {vr(V_PRE+16*b,16)}')
    a('s_nop 7')
    silu_block(a, V_PRE, V_T, V_MP)
    silu_block(a, V_PRE+16, V_T, V_MP+8)
    a('s_nop 1')
    a(f's_cmp_eq_u32 s{S_NEW}, 0')
    a(f's_cbranch_scc1 {L("acc")}')
    for b in range(2):
        a(f'v_mfma_f32_32x32x16_bf16 {vr(V_OUT+16*b,16)}, {q(V_MP,2*b)}, {q(V_ST,0)}, 0')
    a(f's_branch {L("acc2")}')
    a(f'{L("acc")}:')
    for b in range(2):
        a(f'v_mfma_f32_32x32x16_bf16 {vr(V_OUT+16*b,16)}, {q(V_MP,2*b)}, {q(V_ST,0)}, {vr(V_OUT+16*b,16)}')
    a(f'{L("acc2")}:')
    for b in range(2):
        a(f'v_mfma_f32_32x32x16_bf16 {vr(V_OUT+16*b,16)}, {q(V_MP,2*b+1)}, {q(V_ST,1)}, {vr(V_OUT+16*b,16)}')
    a(f's_add_u32 s{S_CAND}, s{S_N0}, 16')
    a(f's_cmp_ge_u32 s{S_LAST}, s{S_CAND}')
    a(f's_cbranch_scc1 {L("pass")}')
    a(f's_add_u32 s{S_TI}, s{S_TI}, 1')

def gen_k2(a, name='egnn_main_kernel'):
    a(f'.globl {name}'); a('.p2align 8'); a(f'.type {name},@function'); a(f'{name}:')
    a(f's_cmp_ge_u32 s2, {NB}')
    a('s_cbranch_scc1 K2_end')
    stamp(a,0)
    a('s_load_dwordx2 s[72:73], s[0:1], 0')
    a('s_load_dwordx2 s[74:75], s[0:1], 64')
    a('s_load_dwordx2 s[76:77], s[0:1], 80')
    a(f'v_and_b32 v{V_L}, 63, v0')
    a('v_lshrrev_b32 v20, 6, v0')
    a('s_nop 0')
    a(f'v_readfirstlane_b32 s{S_W}, v20')
    for i in range(4): a(f'v_mov_b32 v{24+i}, 0')
    a('v_lshlrev_b32 v21, 4, v0')
    a(f'ds_write_b128 v21, v[24:27] offset:{L_STILE}')
    a(f'ds_write_b128 v21, v[24:27] offset:{L_STILE+8192}')
    a(f'v_add_u32 v22, {L_MI}, v21')
    for k in range(3): a(f'ds_write_b128 v22, v[24:27] offset:{8192*k}')
    a('v_cmp_gt_u32 vcc, 256, v0')
    a(f's_and_saveexec_b64 s[{S_SAVE}:{S_SAVE+1}], vcc')
    a(f'ds_write_b128 v21, v[24:27] offset:{L_STILE+16384}')
    a(f's_mov_b64 exec, s[{S_SAVE}:{S_SAVE+1}]')
    a('v_cmp_gt_u32 vcc, 480, v0')
    a(f's_and_saveexec_b64 s[{S_SAVE}:{S_SAVE+1}], vcc')
    a(f'ds_write_b128 v22, v[24:27] offset:{8192*3}')
    a(f's_mov_b64 exec, s[{S_SAVE}:{S_SAVE+1}]')
    a('v_cmp_gt_u32 vcc, 132, v0')
    a(f's_and_saveexec_b64 s[{S_SAVE}:{S_SAVE+1}], vcc')
    a(f'ds_write_b128 v21, v[24:27]')
    a(f's_mov_b64 exec, s[{S_SAVE}:{S_SAVE+1}]')
    a(f's_mul_i32 s{S_NB}, s2, {BN}')
    a(f's_sub_u32 s{S_NN}, {N}, s{S_NB}')
    a(f's_min_u32 s{S_NN}, s{S_NN}, {BN}')
    a(f's_mov_b32 s{S_POS8}, {POS8_OFF}')
    a(f's_mov_b32 s{S_HI}, 0'); a(f's_mov_b32 s{S_HI+1}, -1')
    a(f's_mov_b32 s{S_FLM}, 0xff'); a(f's_mov_b32 s{S_FLM+1}, 0xff')
    a('s_waitcnt lgkmcnt(0)')
    srd(a, S_H, 72, 73, 0, N*128)
    srd(a, S_WS, 76, 77, 0, WS_USED if not STAMP else 0x1000000)
    srd(a, S_OUT, 74, 75, 0, 6700000)
    a(f'v_lshrrev_b32 v20, 4, v{V_L}')
    a('v_lshlrev_b32 v23, 2, v20')
    a(f's_lshl_b32 s{S_T0}, s{S_W}, 7')
    a(f'v_add_u32 v23, s{S_T0}, v23')
    a(f's_lshl_b32 s{S_T1}, s2, 10')
    a(f's_add_u32 s{S_T1}, s{S_T1}, {TAB_OFF}')
    for i in range(8):
        a(f'buffer_load_dword v{V_T+i}, v23, s[{S_WS}:{S_WS+3}], s{S_T1} offen offset:{16*i}')
    a(f'v_and_b32 v28, 31, v{V_L}')
    a(f'v_lshrrev_b32 v29, 5, v{V_L}')
    a(f's_lshl_b32 s{S_T0}, s{S_W}, 5')
    a(f's_add_u32 s{S_T0}, s{S_T0}, s{S_NB}')
    a(f'v_add_u32 v30, s{S_T0}, v28')
    a('v_lshlrev_b32 v30, 7, v30')
    a('v_lshl_add_u32 v30, v29, 3, v30')
    for s in range(4):
        for aa in range(2):
            a(f'buffer_load_dwordx2 {vr(V_HOP+4*s+2*aa,2)}, v30, s[{S_H}:{S_H+3}], 0 offen offset:{32*s+16*aa}')
    a(f'v_lshlrev_b32 v31, 4, v{V_L}')
    def fw1(qi): return vr(V_MP+4*qi,4) if qi<4 else vr(V_OUT+16+4*(qi-4),4)
    a(f's_mov_b32 s{S_T2}, {IMG_OFF+IMG_FW1}')
    for qi in range(8):
        if qi==4: a(f's_add_u32 s{S_T2}, s{S_T2}, 4096')
        a(f'buffer_load_dwordx4 {fw1(qi)}, v31, s[{S_WS}:{S_WS+3}], s{S_T2} offen offset:{1024*(qi&3)}')
    a(f'v_add_u32 v22, s{S_NB}, v0')
    a('v_lshlrev_b32 v22, 3, v22')
    a(f'buffer_load_dwordx2 {vr(V_PG,2)}, v22, s[{S_WS}:{S_WS+3}], s{S_POS8} offen')
    a(f's_mov_b32 s{S_T2}, {IMG_OFF+IMG_WEXT}')
    a(f'buffer_load_dwordx4 {vr(V_P,4)}, v21, s[{S_WS}:{S_WS+3}], s{S_T2} offen')
    a(f's_mov_b32 s{S_T2}, {IMG_OFF+IMG_FW2}')
    for qi in range(8):
        if qi==4: a(f's_add_u32 s{S_T2}, s{S_T2}, 4096')
        a(f'buffer_load_dwordx4 {q(V_FW2,qi)}, v31, s[{S_WS}:{S_WS+3}], s{S_T2} offen offset:{1024*(qi&3)}')
    a(f's_mov_b32 s{S_T2}, {IMG_OFF+IMG_FWX}')
    for qi in range(4):
        a(f'buffer_load_dwordx4 {q(V_FWX,qi)}, v31, s[{S_WS}:{S_WS+3}], s{S_T2} offen offset:{1024*qi}')
    e,hh,g=28,29,20
    a(f's_lshl_b32 s{S_T3}, s{S_W}, 12')
    a(f'v_bfe_u32 v24, v{e}, 1, 3')
    a(f'v_xor_b32 v24, v24, v{hh}')
    a('v_lshlrev_b32 v24, 4, v24')
    a(f'v_lshl_add_u32 v24, v{e}, 7, v24')
    a(f'v_add_u32 v{V_XA}, s{S_T3}, v24')
    for s in range(1,4): a(f'v_xor_b32 v{V_XA+s}, {32*s}, v{V_XA}')
    a(f'v_and_b32 v24, 7, v{V_L}')
    a(f'v_xor_b32 v24, v24, v{g}')
    a(f'v_lshlrev_b32 v{V_CO0}, 4, v24')
    a(f'v_xor_b32 v{V_CO1}, 64, v{V_CO0}')
    a(f's_mul_i32 s{S_T0}, s{S_W}, {STILE_SZ}')
    a(f's_add_u32 s{S_T0}, s{S_T0}, {L_STILE}')
    a(f'v_mul_u32_u24 v24, {SROW}, v{e}')
    a(f'v_add_u32 v24, s{S_T0}, v24')
    a(f'v_lshl_add_u32 v{V_SB}, v{hh}, 5, v24')
    a(f'v_lshl_add_u32 v{V_XEA}, v{hh}, 4, v24')
    a(f'v_bfe_u32 v24, v{V_L}, 2, 2')
    a(f'v_and_b32 v25, 3, v{V_L}')
    a(f'v_and_b32 v26, 1, v{g}')
    a('v_lshlrev_b32 v25, 3, v25')
    a('v_lshl_add_u32 v25, v26, 5, v25')
    a(f'v_lshl_add_u32 v27, v{hh}, 2, v24')
    a(f'v_mul_u32_u24 v27, {SROW}, v27')
    a('v_add_u32 v27, v27, v25')
    a(f'v_add_u32 v{V_TRA}, s{S_T0}, v27')
    a('v_lshl_add_u32 v24, v24, 7, v25')
    a(f'v_mov_b32 v26, {L_ATAB}')
    a(f'v_mov_b32 v27, {L_WEXT}')
    a(f'v_cndmask_b32 v26, v26, v27, s[{S_HI}:{S_HI+1}]')
    a(f'v_add_u32 v{V_WEA}, v24, v26')
    a(f'v_mov_b32 v26, 128')
    a(f'v_cndmask_b32 v{V_M128}, v26, 0, s[{S_HI}:{S_HI+1}]') if False else None
    a(f'v_mov_b32 v27, 0')
    a(f'v_cndmask_b32 v{V_M128}, v26, v27, s[{S_HI}:{S_HI+1}]')
    a(f'v_and_b32 v24, 7, v{e}')
    a('v_lshlrev_b32 v25, 7, v24')
    a(f'v_lshl_add_u32 v25, v{hh}, 3, v25')
    a(f'v_add_u32 v{V_MIA}, {L_MI}, v25')
    a(f'v_lshrrev_b32 v25, 3, v{e}')
    a('v_lshlrev_b32 v25, 2, v25')
    a('v_lshl_add_u32 v25, v24, 4, v25')
    a(f'v_add_u32 v{V_PA}, {L_PACC}, v25')
    a(f'v_mov_b32 v{V_ZERO}, 0')
    a(f'v_mov_b32 v{V_W2A}, 0')
    a(f's_lshl_b32 s{S_T0}, s{S_W}, 5')
    a(f'v_add_u32 v24, s{S_T0}, v{g}')
    a(f's_mov_b32 s{S_T1}, {CH*8}')
    a(f'v_mul_lo_u32 v24, v24, s{S_T1}')
    a(f'v_and_b32 v25, 15, v{V_L}')
    a('v_lshl_add_u32 v24, v25, 3, v24')
    a('v_add_u32 v26, 16, v25')
    a('s_waitcnt vmcnt(14)')
    stamp(a,1)
    RS=V_PRE
    a(f'v_max_u32 v27, v{V_T}, v{V_T+1}')
    for i in range(2,8): a(f'v_max_u32 v27, v27, v{V_T+i}')
    a(f's_mov_b32 s{S_T0}, {33<<16}')
    a(f'v_cmp_le_u32 vcc, s{S_T0}, v27')
    a(f's_cmp_lg_u64 vcc, 0')
    a(f's_cselect_b32 s{S_T4}, 1, 0')
    for i in range(8):
        a(f'v_lshlrev_b32_sdwa v22, 3, v{V_T+i} dst_sel:DWORD dst_unused:UNUSED_PAD src0_sel:DWORD src1_sel:WORD_0')
        a(f'v_add_u32 v22, v22, v24')
        a(f's_mov_b32 s{S_T1}, {REC_OFF+i*4*CH*8}')
        for r in range(2):
            k=i+8*r
            a(f'v_cmp_gt_u32_sdwa s[{S_MASK+2*k}:{S_MASK+2*k+1}], v{V_T+i}, v{25+r} src0_sel:WORD_1 src1_sel:DWORD')
            a(f's_mov_b64 exec, s[{S_MASK+2*k}:{S_MASK+2*k+1}]')
            a(f'buffer_load_dwordx2 {vr(RS+2*k,2)}, v22, s[{S_WS}:{S_WS+3}], s{S_T1} offen offset:{128*r}')
            a('s_mov_b64 exec, -1')
    D0=V_X; D1=V_T
    for b,D in ((0,D0),(1,D1)):
        for s in range(4):
            c='0' if s==0 else vr(D,16)
            a(f'v_mfma_f32_32x32x16_bf16 {vr(D,16)}, {q(V_HOP,s)}, {fw1(4*b+s)}, {c}')
    a('s_waitcnt vmcnt(28)')
    a('v_cmp_gt_u32 vcc, 224, v0')
    a(f's_and_saveexec_b64 s[{S_SAVE}:{S_SAVE+1}], vcc')
    a('v_lshlrev_b32 v22, 3, v0')
    a(f'ds_write_b64 v22, {vr(V_PG,2)} offset:{L_POSO}')
    a(f's_mov_b64 exec, s[{S_SAVE}:{S_SAVE+1}]')
    a('v_cmp_gt_u32 vcc, 64, v0')
    a(f's_and_saveexec_b64 s[{S_SAVE}:{S_SAVE+1}], vcc')
    a(f'v_add_u32 v22, {L_WEXT}, v21')
    a(f'ds_write_b128 v22, {vr(V_P,4)}')
    a(f's_mov_b64 exec, s[{S_SAVE}:{S_SAVE+1}]')
    a('s_nop 7')
    a(f's_cmp_eq_u32 s{S_W}, 7')
    a('s_cbranch_scc1 K2_noatab')
    a(f's_mov_b32 s{S_T0}, {NEG_LOG2E}'); a(f's_mov_b32 s{S_T1}, {NEG_LOG2E}')
    a(f's_lshl_b32 s{S_T2}, s{S_W}, 12')
    a(f's_add_u32 s{S_T2}, s{S_T2}, {L_ATAB}')
    a(f'v_lshlrev_b32 v22, 9, v{hh}')
    a(f'v_lshl_add_u32 v22, v{e}, 1, v22')
    a(f'v_add_u32 v22, s{S_T2}, v22')
    for b,D in ((0,D0),(1,D1)):
        for r in range(0,16,2):
            a(f'v_pk_mul_f32 {vr(D+r,2)}, {vr(D+r,2)}, s[{S_T0}:{S_T1}]')
        for r in range(0,16,2):
            a(f'v_cvt_pk_bf16_f32 v{D+r}, v{D+r}, v{D+r+1}')
        for r in range(0,16,2):
            row=lambda rr:(rr&3)+8*(rr>>2)
            a(f'ds_write_b16 v22, v{D+r} offset:{row(r)*128+64*b}')
            a(f'ds_write_b16_d16_hi v22, v{D+r} offset:{row(r+1)*128+64*b}')
    a('K2_noatab:')
    a(f's_cmp_eq_u32 s{S_T4}, 0')
    a('s_cbranch_scc1 K2_nobad')
    a(f'v_mov_b32 v22, 1')
    a(f'ds_write_b32 v{V_ZERO}, v22 offset:{L_FLAG}')
    a('K2_nobad:')
    a('s_waitcnt lgkmcnt(0)')
    a('s_barrier')
    a('s_waitcnt vmcnt(0)')
    stamp(a,2)
    RK=V_OUT
    HA=V_X
    a('v_mov_b32 v22, 1')
    for k in range(16):
        lab=a.label('K2_rk')
        a(f's_mov_b64 exec, s[{S_MASK+2*k}:{S_MASK+2*k+1}]')
        if k>=8: a(f's_cbranch_execz {lab}')
        a(f'v_lshlrev_b32_sdwa v{HA+k}, 1, v{RS+2*k+1} dst_sel:DWORD dst_unused:UNUSED_PAD src0_sel:DWORD src1_sel:WORD_0')
        a(f'ds_add_rtn_u32 v{RK+k}, v{HA+k}, v22')
        a(f'{lab}:')
    a('s_mov_b64 exec, -1')
    a('s_waitcnt lgkmcnt(0)')
    a('s_barrier')
    stamp(a,3)
    a(f'v_lshlrev_b32 v22, 4, v{V_L}')
    a('ds_read_b128 v[24:27], v22')
    a(f'ds_read_b32 v23, v{V_ZERO} offset:{L_FLAG}')
    a('s_waitcnt lgkmcnt(0)')
    a('v_add_u32 v25, v24, v25')
    a('v_add_u32 v26, v25, v26')
    a('v_add_u32 v27, v26, v27')
    a('v_mov_b32 v30, v27')
    wave_scan(a, 30)
    a('v_sub_u32 v180, v30, v27')
    a('v_add_u32 v181, v180, v24')
    a('v_add_u32 v182, v180, v25')
    a('v_add_u32 v183, v180, v26')
    a(f'ds_write_b128 v22, v[180:183] offset:{L_OFFS}')
    a(f'v_readlane_b32 s{S_TOT}, v30, 63')
    a(f'v_readfirstlane_b32 s{S_T0}, v23')
    a(f's_cmp_lg_u32 s{S_T0}, 0')
    a('s_cbranch_scc1 K2_slow')
    a(f's_cmp_gt_u32 s{S_TOT}, {CAP}')
    a('s_cbranch_scc1 K2_slow')
    for k in range(16):
        lab=a.label('K2_sc')
        a(f's_mov_b64 exec, s[{S_MASK+2*k}:{S_MASK+2*k+1}]')
        if k>=8: a(f's_cbranch_execz {lab}')
        a(f'ds_read_b32 v{HA+k}, v{HA+k} offset:{L_OFFS}')
        a(f'{lab}:')
    a('s_waitcnt lgkmcnt(0)')
    for k in range(16):
        lab=a.label('K2_sw')
        a(f's_mov_b64 exec, s[{S_MASK+2*k}:{S_MASK+2*k+1}]')
        if k>=8: a(f's_cbranch_execz {lab}')
        a(f'v_add_lshl_u32 v{HA+k}, v{HA+k}, v{RK+k}, 3')
        a(f'ds_write_b64 v{HA+k}, {vr(RS+2*k,2)} offset:{L_REC}')
        a(f'{lab}:')
    a('s_mov_b64 exec, -1')
    a('s_waitcnt lgkmcnt(0)')
    a('s_barrier')
    stamp(a,4)
    a(f's_add_u32 s{S_T0}, s{S_TOT}, 31')
    a(f's_lshr_b32 s{S_T0}, s{S_T0}, 5')
    a(f's_lshr_b32 s{S_T1}, s{S_T0}, 3')
    a(f's_and_b32 s{S_T2}, s{S_T0}, 7')
    a(f's_mul_i32 s{S_J0}, s{S_W}, s{S_T1}')
    a(f's_min_u32 s{S_T4}, s{S_W}, s{S_T2}')
    a(f's_add_u32 s{S_J0}, s{S_J0}, s{S_T4}')
    a(f's_cmp_lt_u32 s{S_W}, s{S_T2}')
    a(f's_addc_u32 s{S_NT}, s{S_T1}, 0')
    a(f's_cmp_eq_u32 s{S_NT}, 0')
    a('s_cbranch_scc1 K2_loopdone')
    a(f's_add_u32 s{S_T4}, s{S_J0}, s{S_NT}')
    a(f's_cmp_lg_u32 s{S_T4}, s{S_T0}')
    a('s_cbranch_scc1 K2_nopad')
    a(f's_lshl_b32 s{S_T4}, s{S_TOT}, 3')
    a(f's_add_u32 s{S_T4}, s{S_T4}, {L_REC-8}')
    a(f'v_mov_b32 v22, s{S_T4}')
    a('ds_read_b32 v23, v22 offset:4')
    a('s_waitcnt lgkmcnt(0)')
    a('v_and_b32 v25, 0xffff, v23')
    a('v_lshrrev_b32 v24, 1, v25')
    a(f'v_add_u32 v24, s{S_NB}, v24')
    a(f'v_lshl_add_u32 v22, v{V_L}, 3, v22')
    a('v_cmp_gt_u32 vcc, 32, v1')
    a(f's_and_saveexec_b64 s[{S_SAVE}:{S_SAVE+1}], vcc')
    a('ds_write_b64 v22, v[24:25] offset:8')
    a(f's_mov_b64 exec, s[{S_SAVE}:{S_SAVE+1}]')
    a('K2_nopad:')
    a(f'v_add_u32 v22, s{S_J0}, v{V_L}')
    a('v_lshlrev_b32 v22, 8, v22')
    a(f'v_min_u32 v22, {(CAP//32)*256}, v22')
    a(f'ds_read_u16 v23, v22 offset:{L_REC+4}')
    a(f'ds_read_u16 v24, v22 offset:{L_REC+4+31*8}')
    a(f's_lshl_b32 s{S_T0}, s{S_J0}, 8')
    a(f's_add_u32 s{S_T0}, s{S_T0}, {L_REC}')
    a(f'v_lshrrev_b32 v25, 3, v{V_L}')
    a('v_lshlrev_b32 v25, 3, v25')
    a(f'v_add_u32 v{V_SRCA}, s{S_T0}, v25')
    a(f'v_lshlrev_b32 v25, 3, v{V_L}')
    a(f'v_add_u32 v{V_RECA}, s{S_T0}, v25')
    a('s_waitcnt lgkmcnt(0)')
    a(f'v_lshl_or_b32 v{V_INFO}, v24, 16, v23')
    a(f's_mov_b32 s{S_TI}, 0'); a(f's_mov_b32 s{S_HAVE}, 0'); a(f's_mov_b32 s{S_N0}, 0')
    prep_p1(a)
    src_reads(a)
    a('s_waitcnt vmcnt(0) lgkmcnt(0)')
    prep_p2(a)
    dma_issue(a)
    prep_p1(a)
    stamp(a,5)
    a('K2_loop:')
    tile(a,'A')
    a(f's_cmp_ge_u32 s{S_TI}, s{S_NT}')
    a('s_cbranch_scc1 K2_fin')
    tile(a,'B')
    a(f's_cmp_ge_u32 s{S_TI}, s{S_NT}')
    a('s_cbranch_scc1 K2_fin')
    a('s_waitcnt lgkmcnt(0)')
    prep_p2(a)
    prep_p1(a)
    a('s_branch K2_loop')
    a('K2_fin:')
    flush(a)
    a('K2_loopdone:')
    stamp(a,6)
    a('s_waitcnt vmcnt(0)')
    a(f'v_lshlrev_b32 v31, 4, v{V_L}')
    for img,base in ((IMG_FWH1,V_FW2),(IMG_FWH2,V_PRE)):
        a(f's_mov_b32 s{S_T2}, {IMG_OFF+img}')
        for qi in range(8):
            if qi==4: a(f's_add_u32 s{S_T2}, s{S_T2}, 4096')
            a(f'buffer_load_dwordx4 {q(base,qi)}, v31, s[{S_WS}:{S_WS+3}], s{S_T2} offen offset:{1024*(qi&3)}')
    a('s_waitcnt lgkmcnt(0)')
    a('s_barrier')
    stamp(a,7)
    a(f's_cmp_eq_u32 s{S_W}, 7')
    a('s_cbranch_scc1 K2_posout')
    a(f'v_and_b32 v28, 31, v{V_L}')
    a(f'v_lshrrev_b32 v29, 5, v{V_L}')
    a(f's_lshl_b32 s{S_T0}, s{S_W}, 12')
    a(f's_add_u32 s{S_T0}, s{S_T0}, {L_MI}')
    a('v_lshlrev_b32 v22, 7, v28')
    a('v_lshl_add_u32 v22, v29, 4, v22')
    a(f'v_add_u32 v22, s{S_T0}, v22')
    for s in range(4): a(f'ds_read_b128 {q(V_X,s)}, v22 offset:{32*s}')
    a('s_waitcnt vmcnt(0) lgkmcnt(0)')
    U1=V_OUT; U2=V_T
    for b in range(2):
        for s in range(4):
            c='0' if s==0 else vr(U1+16*b,16)
            a(f'v_mfma_f32_32x32x16_bf16 {vr(U1+16*b,16)}, {q(V_FW2,4*b+s)}, {q(V_HOP,s)}, {c}')
        for s in range(4):
            c='0' if s==0 else vr(U2+16*b,16)
            a(f'v_mfma_f32_32x32x16_bf16 {vr(U2+16*b,16)}, {q(V_PRE,4*b+s)}, {q(V_X,s)}, {c}')
    a('s_nop 7'); a('s_nop 7')
    a(f's_mov_b32 s{S_T0}, {NEG_LN2}'); a(f's_mov_b32 s{S_T1}, {NEG_LN2}')
    a(f's_mov_b32 s74, {NEG_LOG2E}'); a(f's_mov_b32 s75, {NEG_LOG2E}')
    EX=V_PRE
    for r in range(0,32,2):
        a(f'v_pk_fma_f32 {vr(U1+r,2)}, {vr(U2+r,2)}, s[{S_T0}:{S_T1}], {vr(U1+r,2)}')
    for r in range(0,32,2):
        a(f'v_pk_mul_f32 {vr(EX+r,2)}, {vr(U1+r,2)}, s[74:75]')
    for r in range(32): a(f'v_exp_f32 v{EX+r}, v{EX+r}')
    for r in range(0,32,2): a(f'v_pk_add_f32 {vr(EX+r,2)}, {vr(EX+r,2)}, 1.0 op_sel_hi:[1,0]')
    for r in range(32): a(f'v_rcp_f32 v{EX+r}, v{EX+r}')
    for r in range(0,32,2): a(f'v_pk_mul_f32 {vr(EX+r,2)}, {vr(EX+r,2)}, {vr(U1+r,2)}')
    HR=V_T
    for b in range(2):
        for g_ in range(4):
            hb=V_HOP+4*(2*b+(g_>>1))+2*(g_&1)
            r0=16*b+4*g_
            a(f'v_lshlrev_b32 v{HR}, 16, v{hb}')
            a(f'v_and_b32 v{HR+1}, 0xffff0000, v{hb}')
            a(f'v_lshlrev_b32 v{HR+2}, 16, v{hb+1}')
            a(f'v_and_b32 v{HR+3}, 0xffff0000, v{hb+1}')
            a(f'v_pk_add_f32 {vr(EX+r0,2)}, {vr(EX+r0,2)}, {vr(HR,2)}')
            a(f'v_pk_add_f32 {vr(EX+r0+2,2)}, {vr(EX+r0+2,2)}, {vr(HR+2,2)}')
            a(f'v_cvt_pk_bf16_f32 v{U1+8*b+2*g_}, v{EX+r0}, v{EX+r0+1}')
            a(f'v_cvt_pk_bf16_f32 v{U1+8*b+2*g_+1}, v{EX+r0+2}, v{EX+r0+3}')
    a('s_nop 1')
    for b in range(2):
        for gp in range(2):
            base=U1+8*b+4*gp
            a(f'v_permlane32_swap_b32 v{base}, v{base+2}')
            a(f'v_permlane32_swap_b32 v{base+1}, v{base+3}')
    a(f's_lshl_b32 s{S_T0}, s{S_W}, 5')
    a(f'v_add_u32 v22, s{S_T0}, v28')
    a(f'v_cmp_gt_u32 vcc, s{S_NN}, v22')
    a(f'v_add_u32 v22, s{S_NB}, v22')
    a('v_lshlrev_b32 v22, 7, v22')
    a('v_lshl_add_u32 v22, v29, 4, v22')
    a(f's_and_saveexec_b64 s[{S_SAVE}:{S_SAVE+1}], vcc')
    a('s_cbranch_execz K2_done')
    for b in range(2):
        for gp in range(2):
            a(f'buffer_store_dwordx4 {vr(U1+8*b+4*gp,4)}, v22, s[{S_OUT}:{S_OUT+3}], 0 offen offset:{64*b+32*gp}')
    a('s_branch K2_done')
    a('K2_posout:')
    a('s_waitcnt vmcnt(0)')
    a(f's_mov_b32 s{S_T0}, {NEG_LN2}')
    for it in range(4):
        lab=a.label('K2_po')
        a(f'v_add_u32 v22, {64*it}, v{V_L}')
        a(f'v_cmp_gt_u32 vcc, s{S_NN}, v22')
        a(f's_and_saveexec_b64 s[{S_SAVE}:{S_SAVE+1}], vcc')
        a(f's_cbranch_execz {lab}')
        a('v_lshlrev_b32 v23, 4, v22')
        a(f'v_add_u32 v23, {L_PACC}, v23')
        a('ds_read_b128 v[24:27], v23')
        a('v_lshlrev_b32 v23, 3, v22')
        a(f'ds_read_b64 v[28:29], v23 offset:{L_POSO}')
        a('s_waitcnt lgkmcnt(0)')
        a('v_lshlrev_b32 v30, 16, v28')
        a('v_and_b32 v31, 0xffff0000, v28')
        a('v_lshlrev_b32 v32, 16, v29')
        a(f'v_fma_f32 v30, v25, s{S_T0}, v30')
        a(f'v_fma_f32 v31, v26, s{S_T0}, v31')
        a(f'v_fma_f32 v32, v27, s{S_T0}, v32')
        a('v_cvt_pk_bf16_f32 v30, v30, v31')
        a('v_cvt_pk_bf16_f32 v32, v32, v32')
        a(f'v_add_u32 v22, s{S_NB}, v22')
        a('v_mul_u32_u24 v22, 6, v22')
        a(f'v_add_u32 v22, {N*128}, v22')
        a(f'buffer_store_short v30, v22, s[{S_OUT}:{S_OUT+3}], 0 offen')
        a(f'buffer_store_short_d16_hi v30, v22, s[{S_OUT}:{S_OUT+3}], 0 offen offset:2')
        a(f'buffer_store_short v32, v22, s[{S_OUT}:{S_OUT+3}], 0 offen offset:4')
        a(f'{lab}:')
        a(f's_mov_b64 exec, s[{S_SAVE}:{S_SAVE+1}]')
    a('K2_done:')
    if STAMP:
        a('s_mov_b64 exec, -1')
        a('s_waitcnt vmcnt(0) lgkmcnt(0)')
        a('s_memrealtime s[96:97]')
        a('s_waitcnt lgkmcnt(0)')
        a('v_cmp_eq_u32 vcc, 0, v0')
        a(f's_and_saveexec_b64 s[{S_SAVE}:{S_SAVE+1}], vcc')
        a('s_cbranch_execz K2_end')
        a(f's_mul_i32 s{S_T0}, s2, 128')
        a(f's_add_u32 s{S_T0}, s{S_T0}, {STAMP_OFF}')
        a(f'v_mov_b32 v1, s{S_T0}')
        for i in range(9):
            a(f'v_mov_b32 v2, s{80+2*i}'); a(f'v_mov_b32 v3, s{81+2*i}')
            a(f'buffer_store_dwordx2 v[2:3], v1, s[{S_WS}:{S_WS+3}], 0 offen offset:{8*i}')
    a('s_endpgm')
    a('K2_slow:')
    a('s_endpgm')
    a('K2_end:')
    a('s_endpgm')

def k2_desc(name='egnn_main_kernel'):
    return f'''.amdhsa_kernel {name}
  .amdhsa_next_free_vgpr 256
  .amdhsa_next_free_sgpr 102
  .amdhsa_accum_offset 256
  .amdhsa_group_segment_fixed_size 0
  .amdhsa_kernarg_size 88
  .amdhsa_user_sgpr_count 2
  .amdhsa_user_sgpr_kernarg_segment_ptr 1
  .amdhsa_system_sgpr_workgroup_id_x 1
.end_amdhsa_kernel
'''
def build(path, stamp_on=False):
    global STAMP
    STAMP=stamp_on; gen_k1.STAMP=stamp_on
    a=Asm()
    gen_k1.gen_k1(a)
    gen_k2(a)
    hdr=open('gather_scatter__cheap_equivariant_egnn__graph.s.ref').read().split('; Override launch')[0]
    hdr+=f'; @launch kernel=egnn_sort_kernel grid=({gen_k1.K1_GRID},1,1) block=(1024,1,1) lds={gen_k1.K1_LDS}\n'
    hdr+=f'; @launch kernel=egnn_main_kernel grid=({NB},1,1) block=(512,1,1) lds={K2_LDS}\n'
    hdr+='.amdgcn_target "amdgcn-amd-amdhsa--gfx950"\n.text\n'
    txt=hdr+a.text()+'.section .rodata,"a"\n.p2align 6\n'+gen_k1.k1_desc()+'.p2align 6\n'+k2_desc()
    open(path,'w').write(txt)
if __name__=='__main__':
    import sys
    build(sys.argv[1] if len(sys.argv)>1 else 'v1.s', stamp_on=(len(sys.argv)>2 and sys.argv[2]=='stamp'))
```

```python
N=50000; E=800000; NB=256; BN=196; CH=3128; NCH=256
REC_OFF=0
REC_BYTES=NCH*CH*8
TAB_OFF=0x620000
TAB_BYTES=NB*NCH*4
POS8_OFF=0x660000
POS8_BYTES=50176*8
IMG_OFF=0x6C4000
IMG_FW2=0; IMG_FW1=8192; IMG_FWX=16384; IMG_WEXT=20480; IMG_FWH1=24576; IMG_FWH2=32768
IMG_BYTES=40960
WS_USED=IMG_OFF+IMG_BYTES
ACC_OFF=0x700000; ACC_B=196*64*4+196*16
WS_K2=ACC_OFF+256*ACC_B
NEG_LOG2E=0xBFB8AA3B
NEG_LN2=0xBF317218
KNAME='gather_scatter__cheap_equivariant_egnn__graph'

class Asm:
    def __init__(self):
        self.lines=[]
        self.uid=0
    def __call__(self, s):
        for ln in s.split('\n'):
            ln=ln.strip()
            if ln: self.lines.append(('' if ln.endswith(':') else '    ')+ln)
    def label(self, base):
        self.uid+=1
        return f'{base}_{self.uid}'
    def text(self): return '\n'.join(self.lines)+'\n'

def srd(a, s, base_lo, base_hi, off, size):
    if off:
        a(f's_add_u32 s{s}, s{base_lo}, {off}')
        a(f's_addc_u32 s{s+1}, s{base_hi}, 0')
    else:
        a(f's_mov_b32 s{s}, s{base_lo}')
        a(f's_mov_b32 s{s+1}, s{base_hi}')
    a(f's_mov_b32 s{s+2}, {size}')
    a(f's_mov_b32 s{s+3}, 0x20000')

def wave_scan(a, v):
    for m in ('row_shr:1','row_shr:2','row_shr:4','row_shr:8'):
        a('s_nop 1')
        a(f'v_add_u32_dpp v{v}, v{v}, v{v} {m} row_mask:0xf bank_mask:0xf bound_ctrl:0')
    a('s_nop 1')
    a(f'v_add_u32_dpp v{v}, v{v}, v{v} row_bcast:15 row_mask:0xa bank_mask:0xf')
    a('s_nop 1')
    a(f'v_add_u32_dpp v{v}, v{v}, v{v} row_bcast:31 row_mask:0xc bank_mask:0xf')
```

```python
from gen_common import *

K1_LDS = 2048 + CH*8
K1_GRID = 260

STAMP=False
STAMP_OFF=0x800000
def stamp(a,i):
    if STAMP: a(f's_memrealtime s[{64+2*i}:{65+2*i}]')
def stamp_out(a,n,sr,base_off):
    if not STAMP: return
    a('s_waitcnt vmcnt(0) lgkmcnt(0)')
    a(f's_memrealtime s[{64+2*n}:{65+2*n}]')
    a('s_waitcnt lgkmcnt(0)')
    a('v_cmp_eq_u32 vcc, 0, v0')
    a('s_and_saveexec_b64 s[42:43], vcc')
    lab=a.label('st')
    a(f's_cbranch_execz {lab}')
    a(f's_mul_i32 s38, s2, 128')
    a(f's_add_u32 s38, s38, {base_off}')
    a('v_mov_b32 v1, s38')
    for i in range(n+1):
        a(f'v_mov_b32 v2, s{64+2*i}'); a(f'v_mov_b32 v3, s{65+2*i}')
        a(f'buffer_store_dwordx2 v[2:3], v1, s[{sr}:{sr+3}], 0 offen offset:{8*i}')
    a(f'{lab}:')

def gen_k1(a, name='egnn_sort_kernel'):
    a(f'.globl {name}')
    a('.p2align 8')
    a(f'.type {name},@function')
    a(f'{name}:')
    a(f's_cmp_ge_u32 s2, {K1_GRID}')
    a('s_cbranch_scc1 K1_end')
    a('s_load_dwordx8 s[8:15], s[0:1], 8')
    a('s_load_dwordx2 s[16:17], s[0:1], 80')
    a('s_cmp_ge_u32 s2, 256')
    a('s_cbranch_scc1 K1_wprep')
    stamp(a,0)
    a('v_lshlrev_b32 v1, 2, v0')
    a('v_mov_b32 v2, 0')
    a('v_cmp_gt_u32 vcc, 256, v0')
    a('s_and_saveexec_b64 s[40:41], vcc')
    a('s_cbranch_execz K1_z1')
    a('ds_write_b32 v1, v2')
    a('K1_z1:')
    a('s_mov_b64 exec, s[40:41]')
    a(f's_mul_i32 s18, s2, {CH}')
    a(f's_sub_u32 s19, {E}, s18')
    a(f's_min_u32 s19, s19, {CH}')
    a('s_lshr_b32 s19, s19, 2')
    a(f's_mul_i32 s33, s2, {BN}')
    a('v_lshlrev_b32 v3, 2, v0')
    a('v_add_u32 v3, s18, v3')
    a('v_lshlrev_b32 v4, 2, v3')
    a('v_lshlrev_b32 v5, 1, v3')
    a('v_subrev_u32 v6, 782, v0')
    a('v_add_u32 v7, s33, v6')
    a('v_mul_u32_u24 v8, 6, v7')
    a('v_lshlrev_b32 v9, 3, v7')
    a('s_waitcnt lgkmcnt(0)')
    srd(a, 20, 14, 15, 0, E*4)
    srd(a, 24, 12, 13, 0, E*4)
    srd(a, 28, 10, 11, 0, E*2)
    srd(a, 36, 8, 9, 0, N*6)
    srd(a, 44, 16, 17, 0, WS_USED if not STAMP else 0x1000000)
    a('v_cmp_gt_u32 vcc, s19, v0')
    a('s_and_saveexec_b64 s[42:43], vcc')
    a('s_mov_b64 s[48:49], exec')
    a('s_cbranch_execz K1_l1')
    a('buffer_load_dwordx4 v[12:15], v4, s[20:23], 0 offen')
    a('buffer_load_dwordx4 v[16:19], v4, s[24:27], 0 offen')
    a('buffer_load_dwordx2 v[20:21], v5, s[28:31], 0 offen')
    a('K1_l1:')
    a('s_mov_b64 exec, s[42:43]')
    a(f'v_cmp_gt_u32 vcc, {BN}, v6')
    a(f's_mov_b32 s34, {N}')
    a('v_cmp_gt_u32 s[50:51], s34, v7')
    a('s_and_b64 s[50:51], s[50:51], vcc')
    a('s_and_saveexec_b64 s[42:43], s[50:51]')
    a('s_cbranch_execz K1_l2')
    a('buffer_load_ushort v22, v8, s[36:39], 0 offen')
    a('buffer_load_ushort v23, v8, s[36:39], 0 offen offset:2')
    a('buffer_load_ushort v24, v8, s[36:39], 0 offen offset:4')
    a('s_waitcnt vmcnt(0)')
    a('v_lshl_or_b32 v22, v23, 16, v22')
    a('v_mov_b32 v23, v24')
    a(f'v_add_u32 v9, {POS8_OFF}, v9')
    a('buffer_store_dwordx2 v[22:23], v9, s[44:47], 0 offen')
    a('K1_l2:')
    a('s_mov_b64 exec, s[42:43]')
    a('s_waitcnt lgkmcnt(0)')
    a('s_barrier')
    a('s_mov_b64 exec, s[48:49]')
    a('s_cbranch_execz K1_r1')
    a('s_mov_b32 s35, 85599')
    a('v_mov_b32 v25, 1')
    a('s_waitcnt vmcnt(0)')
    stamp(a,1)
    for i in range(4):
        d=12+i
        a(f'v_mul_u32_u24 v{26+i}, s35, v{d}')
        a(f'v_lshrrev_b32 v{26+i}, 24, v{26+i}')
        a(f'v_lshlrev_b32 v{30+i}, 2, v{26+i}')
        a(f'ds_add_rtn_u32 v{34+i}, v{30+i}, v25')
    a('s_mov_b32 s36, 0xffff0000')
    a(f's_movk_i32 s37, {-BN}')
    for i in range(4):
        d=12+i
        a(f'v_mad_i32_i24 v{d}, v{26+i}, s37, v{d}')
        a(f'v_lshlrev_b32 v{d}, 1, v{d}')
    a('v_lshl_or_b32 v12, v20, 16, v12')
    a('v_and_or_b32 v13, v20, s36, v13')
    a('v_lshl_or_b32 v14, v21, 16, v14')
    a('v_and_or_b32 v15, v21, s36, v15')
    a('K1_r1:')
    a('s_mov_b64 exec, -1')
    a('s_waitcnt lgkmcnt(0)')
    a('s_barrier')
    stamp(a,2)
    a('v_and_b32 v38, 63, v0')
    a('v_lshlrev_b32 v39, 4, v38')
    a('ds_read_b128 v[40:43], v39')
    a('s_waitcnt lgkmcnt(0)')
    a('v_add_u32 v44, v40, v41')
    a('v_add_u32 v45, v44, v42')
    a('v_add_u32 v46, v45, v43')
    a('v_mov_b32 v47, v46')
    wave_scan(a, 47)
    a('v_sub_u32 v48, v47, v46')
    a('v_add_u32 v49, v48, v40')
    a('v_add_u32 v50, v48, v44')
    a('v_add_u32 v51, v48, v45')
    a('ds_write_b128 v39, v[48:51] offset:1024')
    a('v_cmp_gt_u32 vcc, 64, v0')
    a('s_and_saveexec_b64 s[42:43], vcc')
    a('s_cbranch_execz K1_t1')
    a('v_lshlrev_b32 v52, 12, v38')
    a('s_lshl_b32 s38, s2, 2')
    a(f's_add_u32 s38, s38, {TAB_OFF}')
    a('v_add_u32 v52, s38, v52')
    for i in range(4):
        a(f'v_lshl_or_b32 v{53+i}, v{40+i}, 16, v{48+i}')
        a(f'buffer_store_dword v{53+i}, v52, s[44:47], 0 offen offset:{1024*i}')
    a('K1_t1:')
    a('s_mov_b64 exec, s[48:49]')
    a('s_cbranch_execz K1_p1')
    for i in range(4):
        a(f'ds_read_b32 v{26+i}, v{30+i} offset:1024')
    for i in range(4):
        a(f's_waitcnt lgkmcnt({3-i})')
        a(f'v_add_u32 v{26+i}, v{26+i}, v{34+i}')
        a(f'v_lshlrev_b32 v{26+i}, 3, v{26+i}')
        a(f'v_mov_b32 v{58+2*i}, v{16+i}')
        a(f'v_mov_b32 v{59+2*i}, v{12+i}')
        a(f'ds_write_b64 v{26+i}, v[{58+2*i}:{59+2*i}] offset:2048')
    a('K1_p1:')
    a('s_mov_b64 exec, -1')
    a('s_waitcnt lgkmcnt(0)')
    a('s_barrier')
    stamp(a,3)
    a('v_lshlrev_b32 v4, 4, v0')
    a('ds_read_b128 v[40:43], v4 offset:2048')
    a(f's_mul_i32 s38, s2, {CH*8}')
    a(f's_add_u32 s38, s38, {REC_OFF}')
    a('v_add_u32 v5, s38, v4')
    a(f'v_cmp_gt_u32 vcc, {CH*8//16-1024}, v0')
    a('s_and_saveexec_b64 s[42:43], vcc')
    a('s_cbranch_execz K1_c1')
    a('ds_read_b128 v[44:47], v4 offset:18432')
    a('v_add_u32 v6, 16384, v5')
    a('s_waitcnt lgkmcnt(0)')
    a('buffer_store_dwordx4 v[44:47], v6, s[44:47], 0 offen')
    a('K1_c1:')
    a('s_mov_b64 exec, s[42:43]')
    a('s_waitcnt lgkmcnt(0)')
    a('buffer_store_dwordx4 v[40:43], v5, s[44:47], 0 offen')
    stamp(a,4)
    stamp_out(a,5,44,STAMP_OFF)
    a('s_endpgm')
    a('K1_wprep:')
    a('s_load_dwordx4 s[20:23], s[0:1], 40')
    a('s_load_dwordx2 s[24:25], s[0:1], 56')
    a('s_waitcnt lgkmcnt(0)')
    srd(a, 28, 20, 21, 0, 130*128)
    srd(a, 32, 24, 25, 0, 128*128)
    srd(a, 36, 22, 23, 0, 128)
    srd(a, 44, 16, 17, 0, WS_USED)
    a('v_lshrrev_b32 v1, 7, v0')
    a('v_bfe_u32 v2, v0, 1, 6')
    a('v_and_b32 v3, 3, v1')
    a('v_lshrrev_b32 v4, 2, v1')
    a('v_lshrrev_b32 v5, 5, v2')
    a('v_and_b32 v6, 31, v2')
    a('v_and_b32 v7, 1, v0')
    a('v_lshl_add_u32 v8, v4, 5, v6')
    a('v_lshlrev_b32 v8, 1, v8')
    a('v_lshlrev_b32 v9, 4, v3')
    a('v_lshl_add_u32 v10, v5, 3, v9')
    a('v_lshl_add_u32 v10, v7, 2, v10')
    a('v_lshl_add_u32 v11, v7, 3, v9')
    a('v_lshl_add_u32 v11, v5, 2, v11')
    a('v_lshlrev_b32 v12, 3, v0')
    a('s_cmp_eq_u32 s2, 256'); a('s_cbranch_scc1 K1_w2')
    a('s_cmp_eq_u32 s2, 257'); a('s_cbranch_scc1 K1_w1')
    a('s_cmp_eq_u32 s2, 258'); a('s_cbranch_scc1 K1_wh1')
    def load4(rowreg, rowadd, sr):
        a(f'v_add_u32 v13, {rowadd}, v{rowreg}')
        a('v_lshl_add_u32 v13, v13, 7, v8')
        for j in range(4):
            a(f'buffer_load_ushort v{14+j}, v13, s[{sr}:{sr+3}], 0 offen offset:{128*j}')
        a('s_waitcnt vmcnt(0)')
    def store2(off):
        a('v_lshl_or_b32 v18, v15, 16, v14')
        a('v_lshl_or_b32 v19, v17, 16, v16')
        a(f'v_add_u32 v12, {IMG_OFF+off}, v12')
        a('buffer_store_dwordx2 v[18:19], v12, s[44:47], 0 offen')
    load4(10, 64, 32); store2(IMG_FWH2); a('s_endpgm')
    a('K1_wh1:')
    load4(11, 0, 32); store2(IMG_FWH1); a('s_endpgm')
    a('K1_w2:')
    load4(10, 64, 28)
    a(f's_mov_b32 s40, {NEG_LOG2E}')
    for j in range(4):
        a(f'v_lshlrev_b32 v{14+j}, 16, v{14+j}')
        a(f'v_mul_f32 v{14+j}, s40, v{14+j}')
    a('v_cvt_pk_bf16_f32 v18, v14, v15')
    a('v_cvt_pk_bf16_f32 v19, v16, v17')
    a(f'v_add_u32 v12, {IMG_OFF+IMG_FW2}, v12')
    a('buffer_store_dwordx2 v[18:19], v12, s[44:47], 0 offen')
    a('s_endpgm')
    a('K1_w1:')
    load4(11, 0, 28); store2(IMG_FW1)
    a('v_lshrrev_b32 v20, 8, v0')
    a('v_and_b32 v21, 3, v0')
    a('v_lshl_add_u32 v20, v20, 2, v21')
    a('v_lshrrev_b32 v21, 3, v20')
    a('v_and_b32 v22, 7, v20')
    a('v_and_b32 v23, 1, v22')
    a('v_lshrrev_b32 v22, 1, v22')
    a('v_bfe_u32 v24, v0, 7, 1')
    a('v_lshlrev_b32 v25, 5, v21')
    a('v_lshl_add_u32 v25, v23, 1, v25')
    a('v_lshl_add_u32 v25, v22, 3, v25')
    a('v_lshl_add_u32 v25, v24, 2, v25')
    a('v_lshlrev_b32 v25, 1, v25')
    a('buffer_load_dword v26, v25, s[36:39], 0 offen')
    a('v_lshlrev_b32 v27, 2, v0')
    a(f'v_add_u32 v27, {IMG_OFF+IMG_FWX}, v27')
    a('v_lshrrev_b32 v28, 5, v0')
    a('v_and_b32 v29, 31, v0')
    a('v_lshlrev_b32 v30, 2, v29')
    a('v_add_u32 v31, 128, v28')
    a('v_lshl_add_u32 v31, v31, 7, v30')
    a('buffer_load_dword v32, v31, s[28:31], 0 offen')
    a('s_waitcnt vmcnt(0)')
    a('buffer_store_dword v26, v27, s[44:47], 0 offen')
    a(f's_mov_b32 s40, {NEG_LOG2E}')
    a('v_lshlrev_b32 v33, 16, v32')
    a('v_and_b32 v34, 0xffff0000, v32')
    a('v_mul_f32 v33, s40, v33')
    a('v_mul_f32 v34, s40, v34')
    a('v_cvt_pk_bf16_f32 v33, v33, v34')
    a('v_lshlrev_b32 v35, 2, v0')
    a(f'v_add_u32 v35, {IMG_OFF+IMG_WEXT}, v35')
    a('v_cmp_gt_u32 vcc, 256, v0')
    a('s_and_saveexec_b64 s[42:43], vcc')
    a('s_cbranch_execz K1_end')
    a('buffer_store_dword v33, v35, s[44:47], 0 offen')
    a('K1_end:')
    a('s_endpgm')

def k1_desc(name='egnn_sort_kernel'):
    return f'''.amdhsa_kernel {name}
  .amdhsa_next_free_vgpr 72
  .amdhsa_next_free_sgpr 96
  .amdhsa_accum_offset 72
  .amdhsa_group_segment_fixed_size 0
  .amdhsa_kernarg_size 88
  .amdhsa_user_sgpr_count 2
  .amdhsa_user_sgpr_kernarg_segment_ptr 1
  .amdhsa_system_sgpr_workgroup_id_x 1
.end_amdhsa_kernel
'''
if __name__=='__main__':
    import sys
    if len(sys.argv)>1 and sys.argv[1]=='stamp': STAMP=True
    a=Asm()
    gen_k1(a)
    hdr=f'; @launch kernel=egnn_sort_kernel grid=({K1_GRID},1,1) block=(1024,1,1) lds={K1_LDS}\n'
    hdr+='.amdgcn_target "amdgcn-amd-amdhsa--gfx950"\n.text\n'
    txt=hdr+a.text()+'.section .rodata,"a"\n.p2align 6\n'+k1_desc()
    open('k1only.s','w').write(txt)
```

```python
from gen_common import *
import gen_k1, os
EXP=os.environ.get('EXP','')
ST3=os.environ.get('ST3','')
SPL=int(os.environ.get('SPL','40'))

L_HIST=0; L_OFFS=1024; L_FLAG=2048
L_WIMG=4096
L_HOP7=28672
L_STILE=32768; STILE_SZ=2560; SROW=80
L_POSO=53248
L_REC=55040
CAP=3584
RS_=136
L_ATAB=83968
L_WEXT=L_ATAB+224*RS_
L_MI=L_WEXT+8*RS_
L_PA=L_MI+204*RS_
L_PB=L_PA+204*32
L_ZEND=L_PB
L_END=L_PB+204*32
L_ZROW=L_MI+200*RS_
K2_LDS=156672
assert L_REC+(CAP+32)*8==L_ATAB and L_MI%16==0 and L_WEXT%16==0 and L_PB%16==0 and L_END<=K2_LDS
SENT=0xffffffff

V_L=1
V_XA=2; V_IDX=[250,252,254,6]; V_CO=[251,253,255,7]; V_SRCA=8; V_RECA=9; V_SB=10; V_SBW=11; V_XEA=12; V_TRA=13
V_WEA=14; V_M128=15; V_MIA=16; V_PA=17; V_INFO=18; V_ZERO=19; V_ONE=248
V_TMP=20
V_SA=26; V_ONEF=27; V_ZQ=28
V_FW2=32; V_FWX=64; V_WE=80; V_X=88; V_XE=104; V_ST=108; V_PRE=116; V_OUT=148; V_T=180; V_MP=196
V_RW=212; V_PG=214; V_PD=216; V_VA=218; V_VB=219; V_W2A=220; V_W2B=221; V_NLA=222; V_NLB=223
V_P=224
V_HOP=232
S_EN=3
S_H=4; S_WS=8; S_OUT=12
S_W=16; S_TOT=17; S_NT=19; S_TI=20; S_INFO=21; S_FIRST=22; S_LAST=23; S_N0=24; S_HAVE=25; S_CAND=27
S_T0=28; S_T1=29; S_HI=30; S_SAVE=34; S_POS8=36; S_NN=37; S_NB=38; S_T2=39
S_MASK=40
S_T3=72; S_T4=73; S_MSK2=74; S_NEND=78; S_ST=79
S_B=98; S_SLOW=99; S_RND=100; S_MAXC=101
S_N0OLD=40; S_N016=41; S_GREM=42; S_FL=43; S_LNL=44; S_FFFF=45; S_P8=52
STAMP=False
STAMP_OFF=0x1800000
def stamp(a,i):
    if STAMP: a(f's_memrealtime s[{80+2*i}:{81+2*i}]')

def q(base,i,n=4): return f'v[{base+n*i}:{base+n*i+n-1}]'
def vr(b,n): return f'v[{b}:{b+n-1}]'
def emit(a,x):
    for it in x:
        if callable(it): it(a)
        else: a(it)

def flush(a, pad=True):
    if pad: a('s_nop 7'); a('s_nop 7')
    FP=V_T
    for b in range(2):
        for qq in range(8):
            a(f'v_cvt_pk_bf16_f32 v{FP+8*b+qq}, v{V_OUT+16*b+2*qq}, v{V_OUT+16*b+2*qq+1}')
            if b==0 and qq==1: a(f's_lshr_b32 s{S_T0}, s{S_N0OLD}, 1')
            if b==0 and qq==3: a(f's_mul_i32 s{S_T1}, s{S_T0}, {RS_}')
            if b==0 and qq==5: a(f's_lshl_b32 s{S_T2}, s{S_T0}, 5')
            if b==1 and qq==0: a(f's_sub_u32 s{S_T0}, s{S_NEND}, s{S_T0}')
            if b==1 and qq==2: a(f's_min_u32 s{S_T0}, s{S_T0}, 8')
            if b==1 and qq==4: a(f's_bfm_b32 s{S_T0}, s{S_T0}, 0')
    a(f'v_add_u32 v{V_TMP}, s{S_T1}, v{V_MIA}')
    a(f'v_add_u32 v{V_TMP+1}, s{S_T2}, v{V_PA}')
    a(f's_mul_i32 s{S_T1}, s{S_T0}, 0x01010100')
    for u in range(16):
        acc=V_TMP+2+(u&1)
        if u<2: a(f'v_dot2_f32_bf16 v{acc}, v{FP+u}, v{V_FWX+u}, 0')
        else:   a(f'v_dot2_f32_bf16 v{acc}, v{FP+u}, v{V_FWX+u}, v{acc}')
    for b in range(2):
        a(f'v_mfma_f32_32x32x16_bf16 {vr(V_OUT+16*b,16)}, {vr(V_ZQ,4)}, {vr(V_ZQ,4)}, 0')
    a(f's_mov_b32 exec_lo, s{S_T0}')
    a(f's_mov_b32 exec_hi, s{S_T0}')
    for b in range(2):
        for g_ in range(4):
            a(f'ds_write_b64 v{V_TMP}, {vr(FP+8*b+2*g_,2)} offset:{64*b+16*g_}')
    a(f's_or_b32 exec_lo, s{S_T1}, 1')
    a(f's_mov_b32 exec_hi, s{S_T1}')
    a(f'v_add_f32 v{V_TMP+2}, v{V_TMP+2}, v{V_TMP+3}')
    a(f's_mov_b32 s{S_FL}, 0')
    a(f'ds_write_b32 v{V_TMP+1}, v{V_TMP+2}')
    a('s_mov_b64 exec, -1')

def dma_lines():
    return [f'buffer_load_dwordx4 v[{V_IDX[i]}:{V_IDX[i]+1}], s[{S_H}:{S_H+3}], 0 idxen offen offset:{1024*i} lds' for i in range(4)]
def dma_issue(a):
    for ln in dma_lines(): a(ln)
def src_lines():
    return [f'ds_read_b32 v{V_IDX[i]}, v{V_SRCA} offset:{64*i}' for i in range(4)]+[f'v_add_u32 v{V_SRCA}, 256, v{V_SRCA}']
def src_reads(a):
    for ln in src_lines(): a(ln)
def rec_read_lines():
    return [f'ds_read_b64 {vr(V_RW,2)}, v{V_RECA}', f'v_add_u32 v{V_RECA}, 512, v{V_RECA}']
def p1_lines():
    return [f'buffer_load_dwordx2 {vr(V_PG,2)}, v{V_RW}, s[{S_P8}:{S_P8+3}], 0 idxen',
            f'v_lshlrev_b32_sdwa v{V_P+7}, 2, v{V_RW+1} dst_sel:DWORD dst_unused:UNUSED_PAD src0_sel:DWORD src1_sel:WORD_0',
            f'ds_read_b64 {vr(V_PD,2)}, v{V_P+7} offset:{L_POSO}']
def sanitize(a):
    lab=a.label('K2_san')
    a(f's_cmp_lt_i32 s{S_GREM}, 64')
    a(f's_cbranch_scc0 {lab}')
    a(f's_max_i32 s{S_T0}, s{S_GREM}, 0')
    a(f'v_cmp_gt_u32 s[{S_MSK2}:{S_MSK2+1}], s{S_T0}, v{V_L}')
    a(f'v_mov_b32 v{V_P+5}, s{S_LNL}')
    a('s_nop 0')
    a(f'v_cndmask_b32 v{V_VA}, v{V_ZERO}, v{V_VA}, s[{S_MSK2}:{S_MSK2+1}]')
    a(f'v_cndmask_b32 v{V_VB}, v{V_ZERO}, v{V_VB}, s[{S_MSK2}:{S_MSK2+1}]')
    a(f'v_cndmask_b32 v{V_W2B}, v{V_ZERO}, v{V_W2B}, s[{S_MSK2}:{S_MSK2+1}]')
    a(f'v_cndmask_b32 v{V_NLA}, v{V_P+5}, v{V_NLA}, s[{S_MSK2}:{S_MSK2+1}]')
    a(f'v_mov_b32 v{V_NLB}, v{V_NLA}')
    a('s_nop 0')
    a(f'{lab}:')
    a(f's_sub_i32 s{S_GREM}, s{S_GREM}, 64')
def prep_groups():
    P=V_P
    g=[]
    g.append([f'v_mov_b32 v{V_NLA}, v{V_RW+1}', f'v_mov_b32 v{V_NLB}, v{V_RW+1}']+rec_read_lines())
    g.append([f'v_lshlrev_b32 v{P}, 16, v{V_PG}', f'v_and_b32 v{P+1}, 0xffff0000, v{V_PG}', f'v_lshlrev_b32 v{P+2}, 16, v{V_PD}'])
    g.append([f'v_and_b32 v{P+3}, 0xffff0000, v{V_PD}', f'v_lshlrev_b32 v{P+4}, 16, v{V_PG+1}', f'v_lshlrev_b32 v{P+5}, 16, v{V_PD+1}'])
    g.append([f'v_sub_f32 v{P}, v{P+2}, v{P}', f'v_sub_f32 v{P+1}, v{P+3}, v{P+1}', f'v_sub_f32 v{P+4}, v{P+5}, v{P+4}'])
    g.append([f'v_cvt_pk_bf16_f32 v{V_VA}, v{V_ONEF}, v{P}', f'v_cvt_pk_bf16_f32 v{V_VB}, v{P+1}, v{P+4}'])
    g.append([f'v_and_b32 v{P+3}, 0xffff0000, v{V_VA}', f'v_mul_f32 v{P+3}, v{P+3}, v{P+3}'])
    g.append([f'v_dot2_f32_bf16 v{P+3}, v{V_VB}, v{V_VB}, v{P+3}'])
    g.append([f'v_cvt_pk_bf16_f32 v{V_W2B}, v{P+3}, v{P+3}', f'v_bfi_b32 v{V_W2B}, s{S_FFFF}, v{V_W2B}, v{V_NLA}'])
    g.append([sanitize])
    g.append([f'v_permlane32_swap_b32 v{V_VA}, v{V_VB}', f'v_permlane32_swap_b32 v{V_NLA}, v{V_NLB}'])
    g.append([f'v_permlane32_swap_b32 v{V_W2A}, v{V_W2B}'])
    return g
def prep_serial(a):
    g=prep_groups()
    for i,x in enumerate(g):
        if i==7: a('s_nop 2')
        if i==9: a('s_nop 1')
        emit(a,x)

PRE0=V_PRE; PRE1=V_PRE+16; MP0=V_MP; MP1=V_MP+8
def mfma(D,A,B,C): return f'v_mfma_f32_32x32x16_bf16 {vr(D,16)}, {vr(A,4)}, {vr(B,4)}, '+('0' if C is None else vr(C,16))
def m_pre(b,s):
    D=V_PRE+16*b
    if s<4: return mfma(D, V_X+4*s, V_FW2+16*b+4*s, None if s==0 else D)
    return mfma(D, V_XE, V_WE+4*b, D)
def m_s(b,k):
    D=V_OUT+16*b
    return mfma(D, V_MP+8*b+4*k, V_ST+4*k, D)

def vphase(a, P, MP, pre_e, pre_r, pre_c=None):
    T=V_T
    pre_c=pre_c or {}
    for i in range(16):
        emit(a,pre_e.get(i,[]))
        a(f'v_exp_f32 v{T+i}, v{P+i}')
    for i in range(0,16,2): a(f'v_pk_add_f32 {vr(T+i,2)}, {vr(T+i,2)}, 1.0 op_sel_hi:[1,0]')
    for i in range(16):
        emit(a,pre_r.get(i,[]))
        a(f'v_rcp_f32 v{T+i}, v{T+i}')
    for i in range(0,16,2): a(f'v_pk_mul_f32 {vr(T+i,2)}, {vr(T+i,2)}, {vr(P+i,2)}')
    for i in range(0,16,2):
        emit(a,pre_c.get(i//2,[]))
        a(f'v_cvt_pk_bf16_f32 v{MP+i//2}, v{T+i}, v{T+i+1}')

def we_lines():
    L=[f's_lshr_b32 s{S_T0}, s{S_N0}, 1', f'v_mad_u32_u24 v{V_TMP}, v{V_M128}, s{S_T0}, v{V_WEA}', f'v_subrev_u32 v{V_SBW}, s{S_N0}, v{V_SB}']
    for b in range(2):
        for aa in range(2):
            L.append(f'ds_read_b64_tr_b16 {vr(V_WE+4*b+2*aa,2)}, v{V_TMP} offset:{64*b+4*RS_*aa}')
    return L
def winchange(a):
    lab=a.label('K2_same')
    a(f's_cbranch_scc0 {lab}')
    a(f's_mov_b32 s{S_N0OLD}, s{S_N0}')
    a(f's_and_b32 s{S_N0}, s{S_INFO}, 0xffff')
    a(f's_add_u32 s{S_N016}, s{S_N0}, 16')
    a(f's_mov_b32 s{S_FL}, 1')
    for ln in we_lines(): a(ln)
    a(f'{lab}:')
def regs(which):
    return (V_VA,V_W2A,V_NLA) if which=='A' else (V_VB,V_W2B,V_NLB)
def tr_lines():
    return [f'ds_read_b64_tr_b16 {vr(V_ST+4*s+2*aa,2)}, v{V_TRA} offset:{(16*s+8*aa)*SROW}' for s in range(2) for aa in range(2)]
def add(d,k,x): d.setdefault(k,[]).extend(x if isinstance(x,list) else [x])

def phase_B(a, nxt):
    pe={}; pr={}
    add(pe,0,['s_waitcnt lgkmcnt(0)', m_s(0,0)]); add(pe,4,m_s(0,1))
    if nxt:
        V,W2,NL=regs(nxt); d=dma_lines()
        add(pe,1,[f'v_readlane_b32 s{S_INFO}, v{V_INFO}, s{S_TI}', d[0]])
        add(pe,2,[f's_lshr_b32 s{S_LAST}, s{S_INFO}, 16', d[1]])
        add(pe,3,[f's_cmp_ge_u32 s{S_LAST}, s{S_N016}', winchange])
        add(pe,5,[f'v_add_u32_sdwa v{V_SA}, v{V_SBW}, v{NL} dst_sel:DWORD dst_unused:UNUSED_PAD src0_sel:DWORD src1_sel:WORD_0'])
        add(pe,6,[f'ds_write_b16 v{V_SA}, v{V}'])
        add(pe,7,[f'ds_write_b16_d16_hi v{V_SA}, v{V} offset:16'])
        add(pe,8,[m_pre(0,0)])
        add(pe,9,[f'ds_read_b128 {vr(V_XE,4)}, v{V_XEA}'])
        add(pe,10,[d[2]]); add(pe,11,[d[3]])
        add(pe,12,[m_pre(0,1)])
        if nxt=='A':
            p=p1_lines(); add(pe,13,p[0]); add(pe,14,p[1]); add(pe,15,p[2])
        add(pr,0,[m_pre(0,2)])
        add(pr,4,[m_pre(0,3)])
        add(pr,5,['s_waitcnt lgkmcnt(0)'])
        add(pr,6,[f'v_cndmask_b32 v{V_XE}, v{V_XE}, v{W2}, s[{S_HI}:{S_HI+1}]'])
        add(pr,8,[m_pre(0,4)])
    vphase(a, PRE1, MP1, pe, pr)

def phase_C(a, which):
    t=tr_lines(); sl=src_lines()
    pe={}; pr={}
    add(pe,0,m_s(1,0)); add(pe,4,m_s(1,1))
    add(pe,5,t[0]); add(pe,6,t[1]); add(pe,7,t[2]); add(pe,8,m_pre(1,0)); add(pe,9,t[3])
    add(pe,10,f'ds_write_b16 v{V_SA}, v{V_ZERO}'); add(pe,11,f'ds_write_b16 v{V_SA}, v{V_ZERO} offset:16'); add(pe,12,m_pre(1,1))
    x=[f'ds_read_b128 {q(V_X,s)}, v{V_XA+s}' for s in range(4)]
    add(pr,0,m_pre(1,2)); add(pr,4,m_pre(1,3)); add(pr,5,['s_waitcnt vmcnt(0)', x[0]]); add(pr,6,x[1]); add(pr,7,x[2]); add(pr,8,m_pre(1,4)); add(pr,9,x[3])
    for i in range(5): add(pr,10+i,sl[i])
    add(pr,15,f's_add_u32 s{S_TI}, s{S_TI}, 1')
    if which=='B':
        g=prep_groups()
        add(pe,1,g[0]); add(pe,2,g[1]); add(pe,3,g[2]); add(pe,5,g[3]); add(pe,7,g[4]); add(pe,10,g[5])
        pe[12]=g[6]+pe[12]
        add(pe,15,g[7])
        add(pr,1,g[8]); add(pr,3,g[9])
        add(pr,6,g[10])
    vphase(a, PRE0, MP0, pe, pr)

def phase_D(a, tag):
    a(f's_cmp_eq_u32 s{S_FL}, 0')
    a(f's_cbranch_scc1 K2_nofl_{tag}')
    flush(a, pad=False)
    a(f'K2_nofl_{tag}:')

def fwh_dma(a):
    a(f's_lshl_b32 s{S_T0}, s{S_W}, 11')
    a(f's_add_u32 s{S_T0}, s{S_T0}, {IMG_OFF+IMG_FWH1}')
    a(f'v_lshlrev_b32 v{V_TMP}, 4, v{V_L}')
    for j in range(2):
        a(f'buffer_load_dwordx4 v{V_TMP}, s[{S_WS}:{S_WS+3}], s{S_T0} offen offset:{1024*j} lds')

def gtile(a, which):
    V,W2,NL=regs(which)
    L=lambda s: f'K2g_{which}_{s}'
    a('s_waitcnt vmcnt(0)')
    for s in range(4):
        a(f'ds_read_b128 {q(V_X,s)}, v{V_XA+s}')
    src_reads(a)
    a(f'v_readlane_b32 s{S_INFO}, v{V_INFO}, s{S_TI}')
    a('s_waitcnt lgkmcnt(0)')
    dma_issue(a)
    a(f's_and_b32 s{S_FIRST}, s{S_INFO}, 0xffff')
    a(f's_lshr_b32 s{S_LAST}, s{S_INFO}, 16')
    a(f's_mov_b32 s{S_CAND}, s{S_FIRST}')
    a(f's_cmp_eq_u32 s{S_HAVE}, 0')
    a(f's_cbranch_scc1 {L("open")}')
    a(f's_add_u32 s{S_T0}, s{S_N0}, 16')
    a(f's_cmp_lt_u32 s{S_LAST}, s{S_T0}')
    a(f's_cbranch_scc1 {L("body")}')
    a(f's_cmp_eq_u32 s{S_FIRST}, s{S_N0}')
    a(f's_cbranch_scc1 {L("body")}')
    a(f'{L("pass")}:')
    a(f's_mov_b32 s{S_N0OLD}, s{S_N0}')
    flush(a)
    a(f'{L("open")}:')
    a(f's_mov_b32 s{S_N0}, s{S_CAND}')
    a(f's_mov_b32 s{S_HAVE}, 1')
    for ln in we_lines(): a(ln)
    a(f'{L("body")}:')
    a(f'v_add_u32_sdwa v{V_SA}, v{V_SBW}, v{NL} dst_sel:DWORD dst_unused:UNUSED_PAD src0_sel:DWORD src1_sel:WORD_0')
    a(f'v_sub_u32 v{V_TMP+1}, v{V_SA}, v{V_SB}')
    a(f'v_cmp_gt_u32 s[{S_MSK2}:{S_MSK2+1}], 16, v{V_TMP+1}')
    a('s_nop 1')
    a(f's_mov_b64 exec, s[{S_MSK2}:{S_MSK2+1}]')
    a(f'ds_write_b16 v{V_SA}, v{V}')
    a(f'ds_write_b16_d16_hi v{V_SA}, v{V} offset:16')
    a('s_mov_b64 exec, -1')
    a(f'ds_read_b128 {vr(V_XE,4)}, v{V_XEA}')
    for ln in tr_lines(): a(ln)
    a(f's_mov_b64 exec, s[{S_MSK2}:{S_MSK2+1}]')
    a(f'ds_write_b16 v{V_SA}, v{V_ZERO}')
    a(f'ds_write_b16 v{V_SA}, v{V_ZERO} offset:16')
    a('s_mov_b64 exec, -1')
    a('s_waitcnt lgkmcnt(0)')
    a(f'v_cndmask_b32 v{V_XE}, v{V_XE}, v{W2}, s[{S_HI}:{S_HI+1}]')
    a('s_nop 1')
    for b in range(2):
        for s in range(5): a(m_pre(b,s))
    a('s_nop 7'); a('s_nop 7')
    vphase(a, PRE0, MP0, {}, {})
    vphase(a, PRE1, MP1, {}, {})
    a('s_nop 1')
    for k in range(2):
        for b in range(2): a(m_s(b,k))
    a(f's_add_u32 s{S_CAND}, s{S_N0}, 16')
    a(f's_cmp_ge_u32 s{S_LAST}, s{S_CAND}')
    a(f's_cbranch_scc1 {L("pass")}')
    a(f's_add_u32 s{S_TI}, s{S_TI}, 1')

def gen_generic(a):
    a('K2_gen:')
    a(f's_mov_b32 s{S_HAVE}, 0')
    for ln in p1_lines(): a(ln)
    a('K2g_loop:')
    gtile(a,'A')
    a(f's_cmp_ge_u32 s{S_TI}, s{S_NT}')
    a('s_cbranch_scc1 K2g_fin')
    gtile(a,'B')
    a(f's_cmp_ge_u32 s{S_TI}, s{S_NT}')
    a('s_cbranch_scc1 K2g_fin')
    prep_serial(a)
    a('s_waitcnt lgkmcnt(0)')
    for ln in p1_lines(): a(ln)
    a('s_branch K2g_loop')
    a('K2g_fin:')
    a(f's_mov_b32 s{S_N0OLD}, s{S_N0}')
    flush(a)
    a('s_waitcnt vmcnt(0)')
    fwh_dma(a)
    a('s_branch K2_loopdone')

def gen_k2(a, name='egnn_main_kernel'):
    a(f'.globl {name}'); a('.p2align 8'); a(f'.type {name},@function'); a(f'{name}:')
    a(f's_cmp_ge_u32 s2, {NB}')
    a('s_cbranch_scc1 K2_end')
    stamp(a,0)
    a('s_load_dwordx2 s[44:45], s[0:1], 80')
    a('s_load_dwordx2 s[40:41], s[0:1], 0')
    a('s_load_dwordx2 s[42:43], s[0:1], 64')
    a(f'v_and_b32 v{V_L}, 63, v0')
    a('v_lshrrev_b32 v20, 6, v0')
    a(f's_and_b32 s{S_T0}, s2, 7')
    a(f's_lshr_b32 s{S_T1}, s2, 3')
    a(f'v_readfirstlane_b32 s{S_W}, v20')
    a(f's_lshl_b32 s{S_T0}, s{S_T0}, 5')
    a(f's_add_u32 s{S_B}, s{S_T0}, s{S_T1}')
    a(f'v_lshrrev_b32 v20, 4, v{V_L}')
    a('v_lshlrev_b32 v23, 2, v20')
    a(f's_lshl_b32 s{S_T0}, s{S_W}, 7')
    a(f'v_add_u32 v23, s{S_T0}, v23')
    a(f's_lshl_b32 s{S_T1}, s{S_B}, 10')
    a(f's_add_u32 s{S_T1}, s{S_T1}, {TAB_OFF}')
    a('v_lshlrev_b32 v21, 4, v0')
    for i in range(4): a(f'v_mov_b32 v{24+i}, 0')
    a('s_waitcnt lgkmcnt(0)')
    srd(a, S_WS, 44, 45, 0, WS_K2 if not STAMP else 0x2000000)
    for i in range(8):
        a(f'buffer_load_dword v{V_T+i}, v23, s[{S_WS}:{S_WS+3}], s{S_T1} offen offset:{16*i}')
    a(f'ds_write_b128 v21, v[24:27] offset:{L_STILE}')
    a(f'ds_write_b128 v21, v[24:27] offset:{L_STILE+8192}')
    ZB=L_WEXT+256
    nz=(L_ZEND-ZB)//16
    assert (L_ZEND-ZB)%16==0 and 2048<nz<=2560
    a(f'v_add_u32 v22, {ZB}, v21')
    for k in range(4): a(f'ds_write_b128 v22, v[24:27] offset:{8192*k}')
    a('v_cmp_gt_u32 vcc, 256, v0')
    a(f's_and_saveexec_b64 s[{S_SAVE}:{S_SAVE+1}], vcc')
    a(f'ds_write_b128 v21, v[24:27] offset:{L_STILE+16384}')
    a(f's_mov_b64 exec, s[{S_SAVE}:{S_SAVE+1}]')
    a(f'v_cmp_gt_u32 vcc, {nz-2048}, v0')
    a(f's_and_saveexec_b64 s[{S_SAVE}:{S_SAVE+1}], vcc')
    a(f'ds_write_b128 v22, v[24:27] offset:{8192*4}')
    a(f's_mov_b64 exec, s[{S_SAVE}:{S_SAVE+1}]')
    a('v_cmp_gt_u32 vcc, 129, v0')
    a(f's_and_saveexec_b64 s[{S_SAVE}:{S_SAVE+1}], vcc')
    a(f'ds_write_b128 v21, v[24:27]')
    a(f's_mov_b64 exec, s[{S_SAVE}:{S_SAVE+1}]')
    a('v_and_b32 v28, 1, v0')
    a('v_add_u32 v24, -1, v28')
    a(f'v_add_u32 v22, {L_PB}, v21')
    a('v_cmp_gt_u32 vcc, 408, v0')
    a(f's_and_saveexec_b64 s[{S_SAVE}:{S_SAVE+1}], vcc')
    a(f'ds_write_b128 v22, v[24:27]')
    a(f's_mov_b64 exec, s[{S_SAVE}:{S_SAVE+1}]')
    a(f's_mul_i32 s{S_NB}, s{S_B}, {BN}')
    a(f's_sub_u32 s{S_NN}, {N}, s{S_NB}')
    a(f's_min_u32 s{S_NN}, s{S_NN}, {BN}')
    a(f's_mov_b32 s{S_POS8}, {POS8_OFF}')
    a(f's_mov_b32 s{S_HI}, 0'); a(f's_mov_b32 s{S_HI+1}, -1')
    a(f's_sub_u32 s{S_H}, s40, 3072'); a(f's_subb_u32 s{S_H+1}, s41, 0'); a(f's_or_b32 s{S_H+1}, s{S_H+1}, {128<<16}'); a(f's_mov_b32 s{S_H+2}, {N}'); a(f's_mov_b32 s{S_H+3}, 0x20000')
    srd(a, S_OUT, 42, 43, 0, 6700000)
    a(f'v_and_b32 v24, 7, v{V_L}')
    a(f'v_xor_b32 v24, v24, v20')
    a('v_lshlrev_b32 v24, 4, v24')
    a('v_xor_b32 v25, 64, v24')
    a(f'v_add_u32 v{V_CO[0]}, 3072, v24')
    a(f'v_add_u32 v{V_CO[1]}, 2048, v25')
    a(f'v_add_u32 v{V_CO[2]}, 1024, v24')
    a(f'v_mov_b32 v{V_CO[3]}, v25')
    a(f'v_lshlrev_b32 v31, 4, v{V_L}')
    a(f's_lshl_b32 s{S_T0}, s{S_W}, 5')
    a(f's_add_u32 s{S_T0}, s{S_T0}, s{S_NB}')
    a(f'v_lshrrev_b32 v25, 3, v{V_L}')
    a(f'v_add_u32 v{V_IDX[0]}, s{S_T0}, v25')
    for i in range(1,4): a(f'v_add_u32 v{V_IDX[i]}, {8*i}, v{V_IDX[0]}')
    a(f's_mov_b32 s{S_T0}, {N-1}')
    for i in range(4): a(f'v_min_u32 v{V_IDX[i]}, s{S_T0}, v{V_IDX[i]}')
    a(f's_mul_i32 s{S_T4}, s{S_W}, {32*RS_}')
    a(f's_add_u32 s{S_T4}, s{S_T4}, {L_ATAB}')
    a(f's_cmp_eq_u32 s{S_W}, 7')
    a(f's_cselect_b32 s{S_T4}, {L_HOP7}, s{S_T4}')
    e,hh,g=28,29,20
    a(f'v_and_b32 v28, 31, v{V_L}')
    a(f'v_lshrrev_b32 v29, 5, v{V_L}')
    a(f's_lshl_b32 s{S_T3}, s{S_W}, 12')
    a(f'v_bfe_u32 v24, v{e}, 1, 3')
    a(f'v_lshlrev_b32 v25, 4, v24')
    a(f'v_lshl_add_u32 v25, v{e}, 7, v25')
    a(f'v_lshl_add_u32 v30, v{hh}, 3, v25')
    a(f'v_xor_b32 v24, v24, v{hh}')
    a('v_lshlrev_b32 v24, 4, v24')
    a(f'v_lshl_add_u32 v24, v{e}, 7, v24')
    a(f'v_add_u32 v{V_XA}, s{S_T3}, v24')
    for s in range(1,4): a(f'v_xor_b32 v{V_XA+s}, {32*s}, v{V_XA}')
    a(f's_mul_i32 s{S_T0}, s{S_W}, {STILE_SZ}')
    a(f's_add_u32 s{S_T0}, s{S_T0}, {L_STILE}')
    a(f'v_mul_u32_u24 v24, {SROW}, v{e}')
    a(f'v_add_u32 v24, s{S_T0}, v24')
    a(f'v_lshl_add_u32 v{V_SB}, v{hh}, 5, v24')
    a(f'v_lshl_add_u32 v{V_XEA}, v{hh}, 4, v24')
    a(f'v_bfe_u32 v24, v{V_L}, 2, 2')
    a(f'v_and_b32 v25, 3, v{V_L}')
    a(f'v_and_b32 v26, 1, v{g}')
    a('v_lshlrev_b32 v25, 3, v25')
    a('v_lshl_add_u32 v25, v26, 5, v25')
    a(f'v_lshl_add_u32 v27, v{hh}, 2, v24')
    a(f'v_mul_u32_u24 v27, {SROW}, v27')
    a('v_add_u32 v27, v27, v25')
    a(f'v_add_u32 v{V_TRA}, s{S_T0}, v27')
    a(f'v_mov_b32 v26, {RS_}')
    a(f'v_mov_b32 v27, 128')
    a(f'v_cndmask_b32 v27, v26, v27, s[{S_HI}:{S_HI+1}]')
    a('v_mad_u32_u24 v24, v24, v27, v25')
    a(f'v_mov_b32 v26, {L_ATAB}')
    a(f'v_mov_b32 v27, {L_WEXT}')
    a(f'v_cndmask_b32 v26, v26, v27, s[{S_HI}:{S_HI+1}]')
    a(f'v_add_u32 v{V_WEA}, v24, v26')
    a(f'v_mov_b32 v26, {RS_}')
    a(f'v_mov_b32 v{V_ZERO}, 0')
    a(f'v_cndmask_b32 v{V_M128}, v26, v{V_ZERO}, s[{S_HI}:{S_HI+1}]')
    a(f'v_and_b32 v24, 7, v{e}')
    a('v_cmp_eq_u32 vcc, 0, v24')
    a(f'v_mul_u32_u24 v25, {RS_}, v24')
    a(f'v_lshl_add_u32 v25, v{hh}, 3, v25')
    a(f'v_mov_b32 v26, {L_MI}')
    a(f'v_mov_b32 v27, {L_ATAB}')
    a('v_cndmask_b32 v26, v26, v27, vcc')
    a(f'v_add_u32 v{V_MIA}, v26, v25')
    a(f'v_lshrrev_b32 v25, 3, v{e}')
    a('v_lshlrev_b32 v25, 2, v25')
    a('v_lshl_add_u32 v25, v24, 5, v25')
    a(f'v_lshl_add_u32 v25, v{hh}, 4, v25')
    a(f'v_mov_b32 v26, {L_PA}')
    a(f'v_mov_b32 v27, {L_PB}')
    a('v_cndmask_b32 v26, v26, v27, vcc')
    a(f'v_add_u32 v{V_PA}, v26, v25')
    a(f'v_mov_b32 v{V_ONE}, 1')
    a(f'v_mov_b32 v{V_W2A}, 0')
    a(f's_lshl_b32 s{S_T0}, s{S_W}, 5')
    a(f'v_add_u32 v24, s{S_T0}, v{g}')
    a(f's_mov_b32 s{S_T1}, {CH*8}')
    a(f'v_mul_lo_u32 v24, v24, s{S_T1}')
    a(f'v_and_b32 v25, 15, v{V_L}')
    a('v_lshl_add_u32 v24, v25, 3, v24')
    a('v_add_u32 v26, 16, v25')
    a(f'v_add_u32 v22, s{S_NB}, v0')
    a('v_lshlrev_b32 v23, 3, v22')
    a('s_waitcnt lgkmcnt(0)')
    a('s_barrier')
    a('s_waitcnt vmcnt(0)')
    stamp(a,1)
    RS=V_PRE
    for i in range(8):
        a(f'v_lshlrev_b32_sdwa v22, 3, v{V_T+i} dst_sel:DWORD dst_unused:UNUSED_PAD src0_sel:DWORD src1_sel:WORD_0')
        a(f'v_add_u32 v22, v22, v24')
        a(f's_mov_b32 s{S_T1}, {REC_OFF+i*4*CH*8}')
        for r in range(2):
            k=i+8*r
            a(f'v_cmp_gt_u32_sdwa s[{S_MASK+2*k}:{S_MASK+2*k+1}], v{V_T+i}, v{25+r} src0_sel:WORD_1 src1_sel:DWORD')
            a(f's_mov_b64 exec, s[{S_MASK+2*k}:{S_MASK+2*k+1}]')
            a(f'buffer_load_dwordx2 {vr(RS+2*k,2)}, v22, s[{S_WS}:{S_WS+3}], s{S_T1} offen offset:{128*r}')
            a('s_mov_b64 exec, -1')
    a(f's_lshl_b32 s{S_T0}, s{S_W}, 10')
    a(f's_add_u32 s{S_T1}, s{S_T0}, {IMG_OFF}')
    a(f's_add_u32 m0, s{S_T0}, {L_WIMG}')
    for j in range(3):
        if j:
            a(f's_add_u32 s{S_T1}, s{S_T1}, 8192')
            a(f's_add_u32 m0, m0, 8192')
        a('s_nop 0')
        a(f'buffer_load_dwordx4 v31, s[{S_WS}:{S_WS+3}], s{S_T1} offen lds')
    a(f's_mov_b32 m0, s{S_T4}')
    a('s_nop 0')
    dma_issue(a)
    a(f'buffer_load_dwordx2 {vr(V_PG,2)}, v23, s[{S_WS}:{S_WS+3}], s{S_POS8} offen')
    a(f'v_max_u32 v27, v{V_T}, v{V_T+1}')
    for i in range(2,8): a(f'v_max_u32 v27, v27, v{V_T+i}')
    a(f's_mov_b32 s{S_T0}, {33<<16}')
    a(f'v_cmp_le_u32 vcc, s{S_T0}, v27')
    a('s_cbranch_vccz K2_nobad')
    a(f'ds_write_b32 v{V_ZERO}, v{V_ONE} offset:{L_FLAG}')
    a('K2_nobad:')
    a(f'v_add_u32 v30, s{S_T4}, v30')
    a('s_waitcnt vmcnt(8)')
    stamp(a,2)
    RK=V_OUT
    HA=V_X
    for k in range(16):
        lab=a.label('K2_rk')
        a(f's_mov_b64 exec, s[{S_MASK+2*k}:{S_MASK+2*k+1}]')
        if k>=8: a(f's_cbranch_execz {lab}')
        a(f'v_lshlrev_b32_sdwa v{HA+k}, 1, v{RS+2*k+1} dst_sel:DWORD dst_unused:UNUSED_PAD src0_sel:DWORD src1_sel:WORD_0')
        a(f'ds_add_rtn_u32 v{RK+k}, v{HA+k}, v{V_ONE}')
        a(f'{lab}:')
    a('s_mov_b64 exec, -1')
    a('s_waitcnt vmcnt(0)')
    a('v_cmp_gt_u32 vcc, 224, v0')
    a(f's_and_saveexec_b64 s[{S_SAVE}:{S_SAVE+1}], vcc')
    a('v_lshlrev_b32 v22, 3, v0')
    a(f'ds_write_b64 v22, {vr(V_PG,2)} offset:{L_POSO}')
    a(f's_mov_b64 exec, s[{S_SAVE}:{S_SAVE+1}]')
    a('s_waitcnt lgkmcnt(0)')
    a('s_barrier')
    stamp(a,3)
    a(f'v_lshlrev_b32 v22, 4, v{V_L}')
    a('ds_read_b128 v[24:27], v22')
    a(f'ds_read_b32 v23, v{V_ZERO} offset:{L_FLAG}')
    def fw1(qi): return vr(V_MP+4*qi,4) if qi<4 else vr(V_OUT+16+4*(qi-4),4)
    for s in range(4):
        for aa in range(2):
            a(f'v_xor_b32 v{V_P}, {(2*s+aa)<<4}, v30')
            a(f'ds_read_b64 {vr(V_HOP+4*s+2*aa,2)}, v{V_P}')
    a('s_waitcnt lgkmcnt(8)')
    for qi in range(8):
        a(f'ds_read_b128 {fw1(qi)}, v31 offset:{L_WIMG+IMG_FW1+1024*qi}')
    a('v_max_u32 v{0}, v24, v25'.format(V_P+1))
    a('v_max_u32 v{0}, v26, v27'.format(V_P+2))
    a('v_max_u32 v{0}, v{0}, v{1}'.format(V_P+1,V_P+2))
    a('v_add_u32 v25, v24, v25')
    a('v_add_u32 v26, v25, v26')
    a('v_add_u32 v27, v26, v27')
    a(f'v_mov_b32 v{V_P+3}, v27')
    wave_scan(a, V_P+3)
    a(f'v_sub_u32 v180, v{V_P+3}, v27')
    a('v_add_u32 v181, v180, v24')
    a('v_add_u32 v182, v180, v25')
    a('v_add_u32 v183, v180, v26')
    a(f'ds_write_b128 v22, v[180:183] offset:{L_OFFS}')
    a(f'v_readlane_b32 s{S_TOT}, v{V_P+3}, 63')
    a(f'v_readfirstlane_b32 s{S_T0}, v23')
    a(f's_movk_i32 s{S_T1}, 1536')
    a(f'v_cmp_lt_u32 vcc, s{S_T1}, v{V_P+1}')
    a(f's_cmp_lg_u32 s{S_T0}, 0')
    a('s_cbranch_scc1 K2_slow')
    a(f's_cmp_gt_u32 s{S_TOT}, {CAP}')
    a('s_cbranch_scc1 K2_slow')
    a('s_cbranch_vccnz K2_slow')
    for k in range(16):
        lab=a.label('K2_sc')
        a(f's_mov_b64 exec, s[{S_MASK+2*k}:{S_MASK+2*k+1}]')
        if k>=8: a(f's_cbranch_execz {lab}')
        a(f'ds_read_b32 v{HA+k}, v{HA+k} offset:{L_OFFS}')
        a(f'{lab}:')
    a('s_mov_b64 exec, -1')
    def cum(dst, addv):
        a(f's_add_u32 s{S_T2}, s{S_W}, {addv}')
        a(f's_min_u32 s{dst}, s{S_T2}, 4')
        a(f's_sub_u32 s{S_T2}, s{S_T2}, s{dst}')
        a(f's_mul_i32 s{dst}, s{dst}, {SPL}')
        a(f's_mul_i32 s{S_T2}, s{S_T2}, {64-SPL}')
        a(f's_add_u32 s{dst}, s{dst}, s{S_T2}')
        a(f's_mul_i32 s{dst}, s{dst}, s{S_TOT}')
        a(f's_lshr_b32 s{dst}, s{dst}, 8')
    cum(S_T0,0); cum(S_T1,1)
    for (tg,dst) in ((S_T0,S_ST),(S_T1,S_NEND)):
        for j in range(4):
            a(f'v_cmp_gt_u32 vcc, s{tg}, v{180+j}')
            if j==0: a(f's_bcnt1_i32_b64 s{dst}, vcc')
            else:
                a(f's_bcnt1_i32_b64 s{S_T2}, vcc')
                a(f's_add_u32 s{dst}, s{dst}, s{S_T2}')
    a(f's_lshl_b32 s{S_T0}, s{S_ST}, 2')
    a(f's_lshl_b32 s{S_T1}, s{S_NEND}, 2')
    a(f'v_mov_b32 v24, s{S_T0}')
    a(f'v_mov_b32 v25, s{S_T1}')
    a(f'ds_read_b32 v24, v24 offset:{L_OFFS}')
    a(f'ds_read_b32 v25, v25 offset:{L_OFFS}')
    a('s_waitcnt lgkmcnt(0)')
    D0=V_FW2; D1=V_FW2+16
    for b,D in ((0,D0),(1,D1)):
        for s in range(4):
            c='0' if s==0 else vr(D,16)
            a(f'v_mfma_f32_32x32x16_bf16 {vr(D,16)}, {fw1(4*b+s)}, {q(V_HOP,s)}, {c}')
    a(f'v_readfirstlane_b32 s{S_ST}, v24')
    a(f'v_readfirstlane_b32 s{S_EN}, v25')
    for k in range(16):
        lab=a.label('K2_sw')
        a(f's_mov_b64 exec, s[{S_MASK+2*k}:{S_MASK+2*k+1}]')
        if k>=8: a(f's_cbranch_execz {lab}')
        a(f'v_add_lshl_u32 v{HA+k}, v{HA+k}, v{RK+k}, 3')
        a(f'ds_write_b64 v{HA+k}, {vr(RS+2*k,2)} offset:{L_REC}')
        a(f'{lab}:')
    a('s_mov_b64 exec, -1')
    a('v_cmp_gt_u32 vcc, 16, v0')
    a(f's_and_saveexec_b64 s[{S_SAVE}:{S_SAVE+1}], vcc')
    a(f's_cbranch_execz K2_nowext')
    a(f'ds_read_b128 {vr(V_P,4)}, v21 offset:{L_WIMG+IMG_WEXT}')
    a(f'v_add_u32 v22, {L_WEXT}, v21')
    a('s_waitcnt lgkmcnt(0)')
    a(f'ds_write_b128 v22, {vr(V_P,4)}')
    a('K2_nowext:')
    a(f's_mov_b64 exec, s[{S_SAVE}:{S_SAVE+1}]')
    a(f's_cmp_eq_u32 s{S_W}, 7')
    a('s_cbranch_scc1 K2_noatab')
    a(f's_mov_b32 s{S_T0}, {NEG_LOG2E}'); a(f's_mov_b32 s{S_T1}, {NEG_LOG2E}')
    a(f'v_mul_u32_u24 v22, {RS_}, v{e}')
    a(f'v_lshl_add_u32 v22, v{hh}, 3, v22')
    a(f'v_add_u32 v22, s{S_T4}, v22')
    for b,D in ((0,D0),(1,D1)):
        for r in range(0,16,2):
            a(f'v_pk_mul_f32 {vr(D+r,2)}, {vr(D+r,2)}, s[{S_T0}:{S_T1}]')
        for r in range(0,16,2):
            a(f'v_cvt_pk_bf16_f32 v{D+r//2}, v{D+r}, v{D+r+1}')
        for g_ in range(4):
            a(f'ds_write_b64 v22, {vr(D+2*g_,2)} offset:{64*b+16*g_}')
    a('K2_noatab:')
    for qi in range(8):
        a(f'ds_read_b128 {q(V_FW2,qi)}, v31 offset:{L_WIMG+IMG_FW2+1024*qi}')
    for qi in range(4):
        a(f'ds_read_b128 {q(V_FWX,qi)}, v31 offset:{L_WIMG+IMG_FWX+1024*qi}')
    a(f's_sub_u32 s{S_T0}, s{S_EN}, s{S_ST}')
    a(f's_add_u32 s{S_NT}, s{S_T0}, 31')
    a(f's_lshr_b32 s{S_NT}, s{S_NT}, 5')
    a(f's_sub_u32 s{S_T2}, s{S_EN}, 1')
    a(f's_max_i32 s{S_T2}, s{S_T2}, 0')
    a(f'v_lshl_add_u32 v22, v{V_L}, 5, s{S_ST}')
    a('v_add_u32 v23, 31, v22')
    a(f'v_min_u32 v22, s{S_T2}, v22')
    a(f'v_min_u32 v23, s{S_T2}, v23')
    a('v_lshlrev_b32 v22, 3, v22')
    a('v_lshlrev_b32 v23, 3, v23')
    a(f's_lshl_b32 s{S_T0}, s{S_ST}, 3')
    a(f's_add_u32 s{S_T0}, s{S_T0}, {L_REC}')
    a(f'v_lshrrev_b32 v25, 3, v{V_L}')
    a('v_lshlrev_b32 v25, 3, v25')
    a(f'v_add_u32 v{V_SRCA}, s{S_T0}, v25')
    a(f'v_lshlrev_b32 v25, 3, v{V_L}')
    a(f'v_add_u32 v{V_RECA}, s{S_T0}, v25')
    a(f's_mov_b32 s{S_TI}, 0')
    a(f's_add_u32 s{S_P8}, s{S_WS}, {POS8_OFF}'); a(f's_addc_u32 s{S_P8+1}, s{S_WS+1}, 0')
    a(f's_or_b32 s{S_P8+1}, s{S_P8+1}, {8<<16}'); a(f's_mov_b32 s{S_P8+2}, 50176'); a(f's_mov_b32 s{S_P8+3}, 0x20000')
    a(f's_mov_b32 m0, s{S_T3}')
    a(f's_mov_b32 s{S_FFFF}, 0xffff')
    a(f's_sub_u32 s{S_GREM}, s{S_EN}, s{S_ST}')
    a(f's_mov_b32 s{S_FL}, 0')
    a(f'v_mov_b32 v{V_ONEF}, 1.0')
    for i in range(4): a(f'v_mov_b32 v{V_ZQ+i}, 0')
    for i in range(8): a(f'v_mov_b32 v{V_MP+8+i}, 0'); a(f'v_mov_b32 v{V_ST+i}, 0')
    a('s_waitcnt lgkmcnt(0)')
    a('s_barrier')
    stamp(a,4)
    a(f's_cmp_eq_u32 s{S_NT}, 0')
    a('s_cbranch_scc1 K2_nt0')
    a(f'ds_read_u16 v22, v22 offset:{L_REC+4}')
    a(f'ds_read_u16 v23, v23 offset:{L_REC+4}')
    src_reads(a)
    for ln in rec_read_lines(): a(ln)
    for b in range(2):
        a(f'v_mfma_f32_32x32x16_bf16 {vr(V_OUT+16*b,16)}, {vr(V_ZQ,4)}, {vr(V_ZQ,4)}, 0')
    a('s_waitcnt lgkmcnt(0)')
    dma_issue(a)
    for ln in p1_lines(): a(ln)
    a(f'v_lshl_or_b32 v{V_INFO}, v23, 16, v22')
    a(f'v_sub_u32 v22, v23, v22')
    a(f's_sub_u32 s{S_T0}, s{S_NT}, 1')
    a(f'v_cmp_le_u32 vcc, 16, v22')
    a(f'v_readlane_b32 s{S_LNL}, v{V_INFO}, s{S_T0}')
    a(f'v_readlane_b32 s{S_INFO}, v{V_INFO}, 0')
    a(f's_lshr_b32 s{S_LNL}, s{S_LNL}, 16')
    a(f's_and_b32 s{S_N0}, s{S_INFO}, 0xffff')
    a(f's_add_u32 s{S_N016}, s{S_N0}, 16')
    a(f's_mov_b32 s{S_N0OLD}, s{S_N0}')
    for ln in we_lines(): a(ln)
    a('s_waitcnt vmcnt(0) lgkmcnt(0)')
    for s_ in range(4):
        a(f'ds_read_b128 {q(V_X,s_)}, v{V_XA+s_}')
    prep_serial(a)
    a('s_waitcnt lgkmcnt(0)')
    a('s_cbranch_vccnz K2_gen')
    src_reads(a)
    a(f'v_add_u32_sdwa v{V_SA}, v{V_SBW}, v{V_NLA} dst_sel:DWORD dst_unused:UNUSED_PAD src0_sel:DWORD src1_sel:WORD_0')
    a(f'ds_write_b16 v{V_SA}, v{V_VA}')
    a(f'ds_write_b16_d16_hi v{V_SA}, v{V_VA} offset:16')
    a(f'ds_read_b128 {vr(V_XE,4)}, v{V_XEA}')
    for s_ in range(4): a(m_pre(0,s_))
    a('s_waitcnt lgkmcnt(0)')
    a(f'v_cndmask_b32 v{V_XE}, v{V_XE}, v{V_W2A}, s[{S_HI}:{S_HI+1}]')
    dma_issue(a)
    a(m_pre(0,4))
    for ln in p1_lines(): a(ln)
    a('s_nop 7'); a('s_nop 1')
    stamp(a,5)
    if STAMP: a('s_memtime s[46:47]')
    a('K2_loop:')
    phase_C(a,'A')
    phase_D(a,'a')
    a(f's_cmp_ge_u32 s{S_TI}, s{S_NT}')
    a('s_cbranch_scc1 K2_fin')
    phase_B(a,'B')
    phase_C(a,'B')
    phase_D(a,'b')
    a(f's_cmp_ge_u32 s{S_TI}, s{S_NT}')
    a('s_cbranch_scc1 K2_fin')
    phase_B(a,'A')
    a('s_branch K2_loop')
    a('K2_nt0:')
    fwh_dma(a)
    a('s_branch K2_loopdone')
    a('K2_fin:')
    fwh_dma(a)
    phase_B(a, None)
    a('s_nop 1')
    a(m_s(1,0)); a(m_s(1,1))
    a(f's_mov_b32 s{S_N0OLD}, s{S_N0}')
    flush(a)
    a('K2_loopdone:')
    stamp(a,6)
    if STAMP: a('s_memtime s[48:49]')
    a(f'v_lshlrev_b32 v31, 4, v{V_L}')
    a(f'v_and_b32 v28, 31, v{V_L}')
    a(f'v_lshrrev_b32 v29, 5, v{V_L}')
    a(f's_lshl_b32 s{S_T0}, s{S_W}, 5')
    a(f'v_add_u32 v23, s{S_T0}, v28')
    a('v_lshlrev_b32 v24, 5, v23')
    a(f'v_add_u32 v24, {L_PB}, v24')
    a(f'v_mul_u32_u24 v22, {RS_}, v23')
    a('v_lshl_add_u32 v22, v29, 4, v22')
    a(f'v_add_u32 v25, {L_MI}, v22')
    a(f'v_add_u32 v26, {L_ATAB}, v22')
    a('v_lshlrev_b32 v27, 4, v29')
    a(f'v_add_u32 v27, {L_ZROW}, v27')
    a('s_waitcnt vmcnt(0) lgkmcnt(0)')
    a('s_barrier')
    stamp(a,7)
    a(f's_cmp_eq_u32 s{S_W}, 7')
    a('s_cbranch_scc1 K2_posout')
    a('ds_read_b32 v24, v24')
    def fwq(qi): return (qi>>1)*4096+(qi&1)*1024
    for qi in range(8): a(f'ds_read_b128 {q(V_FW2,qi)}, v31 offset:{fwq(qi)}')
    for s in range(4): a(f'ds_read2_b64 {q(V_X,s)}, v25 offset0:{4*s} offset1:{4*s+1}')
    a('s_waitcnt lgkmcnt(12)')
    a('v_cmp_ne_u32 vcc, -1, v24')
    a('s_nop 1')
    a('v_cndmask_b32 v26, v27, v26, vcc')
    a('s_waitcnt lgkmcnt(8)')
    for s in range(4): a(f'ds_read2_b64 {q(V_FWX,s)}, v26 offset0:{4*s} offset1:{4*s+1}')
    a('s_waitcnt lgkmcnt(8)')
    U1=V_OUT; U2=V_T
    for b in range(2):
        for s in range(4):
            c='0' if s==0 else vr(U1+16*b,16)
            a(f'v_mfma_f32_32x32x16_bf16 {vr(U1+16*b,16)}, {q(V_FW2,4*b+s)}, {q(V_HOP,s)}, {c}')
            if b==0: a(f'ds_read_b128 {q(V_PRE,2*s)}, v31 offset:{fwq(8+2*s)}'); a(f'ds_read_b128 {q(V_PRE,2*s+1)}, v31 offset:{fwq(8+2*s+1)}')
    a('s_waitcnt lgkmcnt(0)')
    for b in range(2):
        for s in range(4):
            c='0' if s==0 else vr(U2+16*b,16)
            a(f'v_mfma_f32_32x32x16_bf16 {vr(U2+16*b,16)}, {q(V_PRE,4*b+s)}, {q(V_X,s)}, {c}')
        for s in range(4):
            a(f'v_mfma_f32_32x32x16_bf16 {vr(U2+16*b,16)}, {q(V_PRE,4*b+s)}, {q(V_FWX,s)}, {vr(U2+16*b,16)}')
    a(f's_mov_b32 s{S_T0}, {NEG_LN2}'); a(f's_mov_b32 s{S_T1}, {NEG_LN2}')
    a(f's_mov_b32 s74, {NEG_LOG2E}'); a(f's_mov_b32 s75, {NEG_LOG2E}')
    EX=V_FW2
    def fin_block(b):
        for r in range(16*b,16*b+16,2):
            a(f'v_pk_fma_f32 {vr(U1+r,2)}, {vr(U2+r,2)}, s[{S_T0}:{S_T1}], {vr(U1+r,2)}')
        for r in range(16*b,16*b+16,2):
            a(f'v_pk_mul_f32 {vr(EX+r,2)}, {vr(U1+r,2)}, s[74:75]')
        for r in range(16*b,16*b+16): a(f'v_exp_f32 v{EX+r}, v{EX+r}')
        for r in range(16*b,16*b+16,2): a(f'v_pk_add_f32 {vr(EX+r,2)}, {vr(EX+r,2)}, 1.0 op_sel_hi:[1,0]')
        for r in range(16*b,16*b+16): a(f'v_rcp_f32 v{EX+r}, v{EX+r}')
        for r in range(16*b,16*b+16,2): a(f'v_pk_mul_f32 {vr(EX+r,2)}, {vr(EX+r,2)}, {vr(U1+r,2)}')
        HR=V_X
        for g_ in range(4):
            hb=V_HOP+4*(2*b+(g_>>1))+2*(g_&1)
            r0=16*b+4*g_
            a(f'v_lshlrev_b32 v{HR}, 16, v{hb}')
            a(f'v_and_b32 v{HR+1}, 0xffff0000, v{hb}')
            a(f'v_lshlrev_b32 v{HR+2}, 16, v{hb+1}')
            a(f'v_and_b32 v{HR+3}, 0xffff0000, v{hb+1}')
            a(f'v_pk_add_f32 {vr(EX+r0,2)}, {vr(EX+r0,2)}, {vr(HR,2)}')
            a(f'v_pk_add_f32 {vr(EX+r0+2,2)}, {vr(EX+r0+2,2)}, {vr(HR+2,2)}')
            a(f'v_cvt_pk_bf16_f32 v{U1+8*b+2*g_}, v{EX+r0}, v{EX+r0+1}') if False else None
            a(f'v_cvt_pk_bf16_f32 v{V_PRE+8*b+2*g_}, v{EX+r0}, v{EX+r0+1}')
            a(f'v_cvt_pk_bf16_f32 v{V_PRE+8*b+2*g_+1}, v{EX+r0+2}, v{EX+r0+3}')
        a('s_nop 1')
        for gp in range(2):
            base=V_PRE+8*b+4*gp
            a(f'v_permlane32_swap_b32 v{base}, v{base+2}')
            a(f'v_permlane32_swap_b32 v{base+1}, v{base+3}')
        a(f's_mov_b64 exec, s[{S_SAVE}:{S_SAVE+1}]')
        for gp in range(2):
            a(f'buffer_store_dwordx4 {vr(V_PRE+8*b+4*gp,4)}, v22, s[{S_OUT}:{S_OUT+3}], 0 offen offset:{64*b+32*gp} '+ST3)
        a('s_mov_b64 exec, -1')
    a(f'v_cmp_gt_u32 s[{S_SAVE}:{S_SAVE+1}], s{S_NN}, v23')
    a(f'v_add_u32 v22, s{S_NB}, v23')
    a('v_lshlrev_b32 v22, 7, v22')
    a('v_lshl_add_u32 v22, v29, 4, v22')
    a('s_nop 7')
    fin_block(0)
    fin_block(1)
    a('s_branch K2_done')
    a('K2_posout:')
    a(f's_mov_b32 s{S_T0}, {NEG_LN2}')
    for it in range(4):
        lab=a.label('K2_po')
        a(f'v_add_u32 v22, {64*it}, v{V_L}')
        a(f'v_cmp_gt_u32 vcc, s{S_NN}, v22')
        a(f's_and_saveexec_b64 s[{S_SAVE}:{S_SAVE+1}], vcc')
        a(f's_cbranch_execz {lab}')
        a('v_lshlrev_b32 v23, 5, v22')
        a(f'v_add_u32 v24, {L_PB}, v23')
        a(f'v_add_u32 v23, {L_PA}, v23')
        a('ds_read_b128 v[32:35], v23')
        a('ds_read_b128 v[36:39], v23 offset:16')
        a('ds_read_b128 v[40:43], v24')
        a('ds_read_b128 v[44:47], v24 offset:16')
        a('v_lshlrev_b32 v23, 3, v22')
        a(f'ds_read_b64 v[28:29], v23 offset:{L_POSO}')
        a('s_waitcnt lgkmcnt(0)')
        for j in (1,2,3):
            a(f'v_add_f32 v{32+j}, v{32+j}, v{36+j}')
            a(f'v_add_f32 v{40+j}, v{40+j}, v{44+j}')
            a(f'v_add_f32 v{32+j}, v{32+j}, v{40+j}')
        a('v_lshlrev_b32 v30, 16, v28')
        a('v_and_b32 v31, 0xffff0000, v28')
        a('v_lshlrev_b32 v27, 16, v29')
        a(f'v_fma_f32 v30, v33, s{S_T0}, v30')
        a(f'v_fma_f32 v31, v34, s{S_T0}, v31')
        a(f'v_fma_f32 v27, v35, s{S_T0}, v27')
        a('v_cvt_pk_bf16_f32 v30, v30, v31')
        a('v_cvt_pk_bf16_f32 v27, v27, v27')
        a(f'v_add_u32 v22, s{S_NB}, v22')
        a('v_mul_u32_u24 v22, 6, v22')
        a(f'v_add_u32 v22, {N*128}, v22')
        a(f'buffer_store_short v30, v22, s[{S_OUT}:{S_OUT+3}], 0 offen')
        a(f'buffer_store_short_d16_hi v30, v22, s[{S_OUT}:{S_OUT+3}], 0 offen offset:2')
        a(f'buffer_store_short v27, v22, s[{S_OUT}:{S_OUT+3}], 0 offen offset:4')
        a(f'{lab}:')
        a(f's_mov_b64 exec, s[{S_SAVE}:{S_SAVE+1}]')
    a('K2_done:')
    if STAMP:
        a('s_mov_b64 exec, -1')
        a('s_waitcnt vmcnt(0) lgkmcnt(0)')
        a('s_memrealtime s[96:97]')
        a('s_waitcnt lgkmcnt(0)')
        a(f'v_cmp_eq_u32 vcc, 0, v{V_L}')
        a(f's_and_saveexec_b64 s[{S_SAVE}:{S_SAVE+1}], vcc')
        a('s_cbranch_execz K2_end')
        a(f's_lshl_b32 s{S_T0}, s2, 3')
        a(f's_add_u32 s{S_T0}, s{S_T0}, s{S_W}')
        a(f's_lshl_b32 s{S_T0}, s{S_T0}, 7')
        a(f's_add_u32 s{S_T0}, s{S_T0}, {STAMP_OFF}')
        a(f'v_mov_b32 v1, s{S_T0}')
        for i in range(9):
            a(f'v_mov_b32 v2, s{80+2*i}'); a(f'v_mov_b32 v3, s{81+2*i}')
            a(f'buffer_store_dwordx2 v[2:3], v1, s[{S_WS}:{S_WS+3}], 0 offen offset:{8*i}')
        a(f'v_mov_b32 v2, s{S_NT}'); a(f'v_mov_b32 v3, 0')
        a(f'buffer_store_dwordx2 v[2:3], v1, s[{S_WS}:{S_WS+3}], 0 offen offset:72')
        a(f'v_mov_b32 v2, s46'); a(f'v_mov_b32 v3, s47')
        a(f'buffer_store_dwordx2 v[2:3], v1, s[{S_WS}:{S_WS+3}], 0 offen offset:80')
        a(f'v_mov_b32 v2, s48'); a(f'v_mov_b32 v3, s49')
        a(f'buffer_store_dwordx2 v[2:3], v1, s[{S_WS}:{S_WS+3}], 0 offen offset:88')
    a('s_endpgm')
    gen_generic(a)
    a('K2_slow:')
    a('s_endpgm')
    a('K2_end:')
    a('s_endpgm')

def k2_desc(name='egnn_main_kernel'):
    return f'''.amdhsa_kernel {name}
  .amdhsa_next_free_vgpr 256
  .amdhsa_next_free_sgpr 102
  .amdhsa_accum_offset 256
  .amdhsa_group_segment_fixed_size 0
  .amdhsa_kernarg_size 88
  .amdhsa_user_sgpr_count 2
  .amdhsa_user_sgpr_kernarg_segment_ptr 1
  .amdhsa_system_sgpr_workgroup_id_x 1
.end_amdhsa_kernel
'''
def build(path, stamp_on=False):
    global STAMP
    STAMP=stamp_on; gen_k1.STAMP=stamp_on
    a=Asm()
    gen_k1.gen_k1(a)
    gen_k2(a)
    hdr=open('gather_scatter__cheap_equivariant_egnn__graph.s.ref').read().split('; Override launch')[0]
    hdr+=f'; @launch kernel=egnn_sort_kernel grid=({gen_k1.K1_GRID},1,1) block=({gen_k1.K1_BLOCK if hasattr(gen_k1,"K1_BLOCK") else 1024},1,1) lds={gen_k1.K1_LDS}\n'
    hdr+=f'; @launch kernel=egnn_main_kernel grid=({NB},1,1) block=(512,1,1) lds={K2_LDS}\n'
    hdr+='.amdgcn_target "amdgcn-amd-amdhsa--gfx950"\n.text\n'
    txt=hdr+a.text()+'.section .rodata,"a"\n.p2align 6\n'+gen_k1.k1_desc()+'.p2align 6\n'+k2_desc()
    open(path,'w').write(txt)
if __name__=='__main__':
    import sys
    build(sys.argv[1] if len(sys.argv)>1 else 'v5.s', stamp_on=(len(sys.argv)>2 and sys.argv[2]=='stamp'))
```

```python
from gen_common import *
import os
ST1=os.environ.get('ST1','')
ST2=os.environ.get('ST2','')

K1_LDS = 2048 + CH*8
K1_GRID = 260

STAMP=False
STAMP_OFF=0x800000
def stamp(a,i):
    if STAMP: a(f's_memrealtime s[{64+2*i}:{65+2*i}]')
def stamp_out(a,n,sr,base_off):
    if not STAMP: return
    a('s_waitcnt vmcnt(0) lgkmcnt(0)')
    a(f's_memrealtime s[{64+2*n}:{65+2*n}]')
    a('s_waitcnt lgkmcnt(0)')
    a('v_cmp_eq_u32 vcc, 0, v0')
    a('s_and_saveexec_b64 s[42:43], vcc')
    lab=a.label('st')
    a(f's_cbranch_execz {lab}')
    a(f's_mul_i32 s38, s2, 128')
    a(f's_add_u32 s38, s38, {base_off}')
    a('v_mov_b32 v1, s38')
    for i in range(n+1):
        a(f'v_mov_b32 v2, s{64+2*i}'); a(f'v_mov_b32 v3, s{65+2*i}')
        a(f'buffer_store_dwordx2 v[2:3], v1, s[{sr}:{sr+3}], 0 offen offset:{8*i}')
    a(f'{lab}:')

def gen_k1(a, name='egnn_sort_kernel'):
    a(f'.globl {name}')
    a('.p2align 8')
    a(f'.type {name},@function')
    a(f'{name}:')
    a(f's_cmp_ge_u32 s2, {K1_GRID}')
    a('s_cbranch_scc1 K1_end')
    a('s_load_dwordx8 s[8:15], s[0:1], 8')
    a('s_load_dwordx2 s[16:17], s[0:1], 80')
    a('s_cmp_ge_u32 s2, 256')
    a('s_cbranch_scc1 K1_wprep')
    stamp(a,0)
    a('v_lshlrev_b32 v1, 2, v0')
    a('v_mov_b32 v2, 0')
    a('v_cmp_gt_u32 vcc, 256, v0')
    a('s_and_saveexec_b64 s[40:41], vcc')
    a('s_cbranch_execz K1_z1')
    a('ds_write_b32 v1, v2')
    a('K1_z1:')
    a('s_mov_b64 exec, s[40:41]')
    a(f's_mul_i32 s18, s2, {CH}')
    a(f's_sub_u32 s19, {E}, s18')
    a(f's_min_u32 s19, s19, {CH}')
    a('s_lshr_b32 s19, s19, 2')
    a(f's_mul_i32 s33, s2, {BN}')
    a('v_lshlrev_b32 v3, 2, v0')
    a('v_add_u32 v3, s18, v3')
    a('v_lshlrev_b32 v4, 2, v3')
    a('v_lshlrev_b32 v5, 1, v3')
    a('v_subrev_u32 v6, 782, v0')
    a('v_add_u32 v7, s33, v6')
    a('v_mul_u32_u24 v8, 6, v7')
    a('v_lshlrev_b32 v9, 3, v7')
    a('s_waitcnt lgkmcnt(0)')
    srd(a, 20, 14, 15, 0, E*4)
    srd(a, 24, 12, 13, 0, E*4)
    srd(a, 28, 10, 11, 0, E*2)
    srd(a, 36, 8, 9, 0, N*6)
    srd(a, 44, 16, 17, 0, WS_USED if not STAMP else 0x1000000)
    a('v_cmp_gt_u32 vcc, s19, v0')
    a('s_and_saveexec_b64 s[42:43], vcc')
    a('s_mov_b64 s[48:49], exec')
    a('s_cbranch_execz K1_l1')
    a('buffer_load_dwordx4 v[12:15], v4, s[20:23], 0 offen')
    a('buffer_load_dwordx4 v[16:19], v4, s[24:27], 0 offen')
    a('buffer_load_dwordx2 v[20:21], v5, s[28:31], 0 offen')
    a('K1_l1:')
    a('s_mov_b64 exec, s[42:43]')
    a(f'v_cmp_gt_u32 vcc, {BN}, v6')
    a(f's_mov_b32 s34, {N}')
    a('v_cmp_gt_u32 s[50:51], s34, v7')
    a('s_and_b64 s[50:51], s[50:51], vcc')
    a('s_and_saveexec_b64 s[42:43], s[50:51]')
    a('s_cbranch_execz K1_l2')
    a('buffer_load_ushort v22, v8, s[36:39], 0 offen')
    a('buffer_load_ushort v23, v8, s[36:39], 0 offen offset:2')
    a('buffer_load_ushort v24, v8, s[36:39], 0 offen offset:4')
    a('s_waitcnt vmcnt(0)')
    a('v_lshl_or_b32 v22, v23, 16, v22')
    a('v_mov_b32 v23, v24')
    a(f'v_add_u32 v9, {POS8_OFF}, v9')
    a('buffer_store_dwordx2 v[22:23], v9, s[44:47], 0 offen '+ST2)
    a('K1_l2:')
    a('s_mov_b64 exec, s[42:43]')
    a('s_waitcnt lgkmcnt(0)')
    a('s_barrier')
    a('s_mov_b64 exec, s[48:49]')
    a('s_cbranch_execz K1_r1')
    a('s_mov_b32 s35, 85599')
    a('v_mov_b32 v25, 1')
    a('s_waitcnt vmcnt(0)')
    stamp(a,1)
    for i in range(4):
        d=12+i
        a(f'v_mul_u32_u24 v{26+i}, s35, v{d}')
        a(f'v_lshrrev_b32 v{26+i}, 24, v{26+i}')
        a(f'v_lshlrev_b32 v{30+i}, 2, v{26+i}')
        a(f'ds_add_rtn_u32 v{34+i}, v{30+i}, v25')
    a('s_mov_b32 s36, 0xffff0000')
    a(f's_movk_i32 s37, {-BN}')
    for i in range(4):
        d=12+i
        a(f'v_mad_i32_i24 v{d}, v{26+i}, s37, v{d}')
        a(f'v_lshlrev_b32 v{d}, 1, v{d}')
    a('v_lshl_or_b32 v12, v20, 16, v12')
    a('v_and_or_b32 v13, v20, s36, v13')
    a('v_lshl_or_b32 v14, v21, 16, v14')
    a('v_and_or_b32 v15, v21, s36, v15')
    a('K1_r1:')
    a('s_mov_b64 exec, -1')
    a('s_waitcnt lgkmcnt(0)')
    a('s_barrier')
    stamp(a,2)
    a('v_and_b32 v38, 63, v0')
    a('v_lshlrev_b32 v39, 4, v38')
    a('ds_read_b128 v[40:43], v39')
    a('s_waitcnt lgkmcnt(0)')
    a('v_add_u32 v44, v40, v41')
    a('v_add_u32 v45, v44, v42')
    a('v_add_u32 v46, v45, v43')
    a('v_mov_b32 v47, v46')
    wave_scan(a, 47)
    a('v_sub_u32 v48, v47, v46')
    a('v_add_u32 v49, v48, v40')
    a('v_add_u32 v50, v48, v44')
    a('v_add_u32 v51, v48, v45')
    a('ds_write_b128 v39, v[48:51] offset:1024')
    a('v_cmp_gt_u32 vcc, 64, v0')
    a('s_and_saveexec_b64 s[42:43], vcc')
    a('s_cbranch_execz K1_t1')
    a('v_lshlrev_b32 v52, 12, v38')
    a('s_lshl_b32 s38, s2, 2')
    a(f's_add_u32 s38, s38, {TAB_OFF}')
    a('v_add_u32 v52, s38, v52')
    for i in range(4):
        a(f'v_lshl_or_b32 v{53+i}, v{40+i}, 16, v{48+i}')
        a(f'buffer_store_dword v{53+i}, v52, s[44:47], 0 offen offset:{1024*i} '+ST2)
    a('K1_t1:')
    a('s_mov_b64 exec, s[48:49]')
    a('s_cbranch_execz K1_p1')
    for i in range(4):
        a(f'ds_read_b32 v{26+i}, v{30+i} offset:1024')
    for i in range(4):
        a(f's_waitcnt lgkmcnt({3-i})')
        a(f'v_add_u32 v{26+i}, v{26+i}, v{34+i}')
        a(f'v_lshlrev_b32 v{26+i}, 3, v{26+i}')
        a(f'v_mov_b32 v{58+2*i}, v{16+i}')
        a(f'v_mov_b32 v{59+2*i}, v{12+i}')
        a(f'ds_write_b64 v{26+i}, v[{58+2*i}:{59+2*i}] offset:2048')
    a('K1_p1:')
    a('s_mov_b64 exec, -1')
    a('s_waitcnt lgkmcnt(0)')
    a('s_barrier')
    stamp(a,3)
    a('v_lshlrev_b32 v4, 4, v0')
    a('ds_read_b128 v[40:43], v4 offset:2048')
    a(f's_mul_i32 s38, s2, {CH*8}')
    a(f's_add_u32 s38, s38, {REC_OFF}')
    a('v_add_u32 v5, s38, v4')
    a(f'v_cmp_gt_u32 vcc, {CH*8//16-1024}, v0')
    a('s_and_saveexec_b64 s[42:43], vcc')
    a('s_cbranch_execz K1_c1')
    a('ds_read_b128 v[44:47], v4 offset:18432')
    a('v_add_u32 v6, 16384, v5')
    a('s_waitcnt lgkmcnt(0)')
    a('buffer_store_dwordx4 v[44:47], v6, s[44:47], 0 offen '+ST1)
    a('K1_c1:')
    a('s_mov_b64 exec, s[42:43]')
    a('s_waitcnt lgkmcnt(0)')
    a('buffer_store_dwordx4 v[40:43], v5, s[44:47], 0 offen '+ST1)
    stamp(a,4)
    stamp_out(a,5,44,STAMP_OFF)
    a('s_endpgm')
    a('K1_wprep:')
    a('s_load_dwordx4 s[20:23], s[0:1], 40')
    a('s_load_dwordx2 s[24:25], s[0:1], 56')
    a('s_waitcnt lgkmcnt(0)')
    srd(a, 28, 20, 21, 0, 130*128)
    srd(a, 32, 24, 25, 0, 128*128)
    srd(a, 36, 22, 23, 0, 128)
    srd(a, 44, 16, 17, 0, WS_USED)
    a('v_lshrrev_b32 v1, 7, v0')
    a('v_bfe_u32 v2, v0, 1, 6')
    a('v_and_b32 v3, 3, v1')
    a('v_lshrrev_b32 v4, 2, v1')
    a('v_lshrrev_b32 v5, 5, v2')
    a('v_and_b32 v6, 31, v2')
    a('v_and_b32 v7, 1, v0')
    a('v_lshl_add_u32 v8, v4, 5, v6')
    a('v_lshlrev_b32 v8, 1, v8')
    a('v_lshlrev_b32 v9, 4, v3')
    a('v_lshl_add_u32 v10, v5, 3, v9')
    a('v_lshl_add_u32 v10, v7, 2, v10')
    a('v_lshl_add_u32 v11, v7, 3, v9')
    a('v_lshl_add_u32 v11, v5, 2, v11')
    a('v_lshlrev_b32 v12, 3, v0')
    a('s_cmp_eq_u32 s2, 256'); a('s_cbranch_scc1 K1_w2')
    a('s_cmp_eq_u32 s2, 257'); a('s_cbranch_scc1 K1_w1')
    a('s_cmp_eq_u32 s2, 258'); a('s_cbranch_scc1 K1_wh1')
    def load4(rowreg, rowadd, sr):
        a(f'v_add_u32 v13, {rowadd}, v{rowreg}')
        a('v_lshl_add_u32 v13, v13, 7, v8')
        for j in range(4):
            a(f'buffer_load_ushort v{14+j}, v13, s[{sr}:{sr+3}], 0 offen offset:{128*j}')
        a('s_waitcnt vmcnt(0)')
    def store2(off):
        a('v_lshl_or_b32 v18, v15, 16, v14')
        a('v_lshl_or_b32 v19, v17, 16, v16')
        a(f'v_add_u32 v12, {IMG_OFF+off}, v12')
        a('buffer_store_dwordx2 v[18:19], v12, s[44:47], 0 offen')
    load4(10, 64, 32); store2(IMG_FWH2); a('s_endpgm')
    a('K1_wh1:')
    load4(11, 0, 32); store2(IMG_FWH1); a('s_endpgm')
    a('K1_w2:')
    load4(10, 64, 28)
    a(f's_mov_b32 s40, {NEG_LOG2E}')
    for j in range(4):
        a(f'v_lshlrev_b32 v{14+j}, 16, v{14+j}')
        a(f'v_mul_f32 v{14+j}, s40, v{14+j}')
    a('v_cvt_pk_bf16_f32 v18, v14, v15')
    a('v_cvt_pk_bf16_f32 v19, v16, v17')
    a(f'v_add_u32 v12, {IMG_OFF+IMG_FW2}, v12')
    a('buffer_store_dwordx2 v[18:19], v12, s[44:47], 0 offen')
    a('s_endpgm')
    a('K1_w1:')
    load4(11, 0, 28); store2(IMG_FW1)
    a('v_lshrrev_b32 v20, 8, v0')
    a('v_and_b32 v21, 3, v0')
    a('v_lshl_add_u32 v20, v20, 2, v21')
    a('v_lshrrev_b32 v21, 3, v20')
    a('v_and_b32 v22, 7, v20')
    a('v_and_b32 v23, 1, v22')
    a('v_lshrrev_b32 v22, 1, v22')
    a('v_bfe_u32 v24, v0, 7, 1')
    a('v_lshlrev_b32 v25, 5, v21')
    a('v_lshl_add_u32 v25, v23, 1, v25')
    a('v_lshl_add_u32 v25, v22, 3, v25')
    a('v_lshl_add_u32 v25, v24, 2, v25')
    a('v_lshlrev_b32 v25, 1, v25')
    a('buffer_load_dword v26, v25, s[36:39], 0 offen')
    a('v_lshlrev_b32 v27, 2, v0')
    a(f'v_add_u32 v27, {IMG_OFF+IMG_FWX}, v27')
    a('v_lshrrev_b32 v28, 5, v0')
    a('v_and_b32 v29, 31, v0')
    a('v_lshlrev_b32 v30, 2, v29')
    a('v_add_u32 v31, 128, v28')
    a('v_lshl_add_u32 v31, v31, 7, v30')
    a('buffer_load_dword v32, v31, s[28:31], 0 offen')
    a('s_waitcnt vmcnt(0)')
    a('buffer_store_dword v26, v27, s[44:47], 0 offen')
    a(f's_mov_b32 s40, {NEG_LOG2E}')
    a('v_lshlrev_b32 v33, 16, v32')
    a('v_and_b32 v34, 0xffff0000, v32')
    a('v_mul_f32 v33, s40, v33')
    a('v_mul_f32 v34, s40, v34')
    a('v_cvt_pk_bf16_f32 v33, v33, v34')
    a('v_lshlrev_b32 v35, 2, v0')
    a(f'v_add_u32 v35, {IMG_OFF+IMG_WEXT}, v35')
    a('v_cmp_gt_u32 vcc, 256, v0')
    a('s_and_saveexec_b64 s[42:43], vcc')
    a('s_cbranch_execz K1_end')
    a('buffer_store_dword v33, v35, s[44:47], 0 offen')
    a('K1_end:')
    a('s_endpgm')

def k1_desc(name='egnn_sort_kernel'):
    return f'''.amdhsa_kernel {name}
  .amdhsa_next_free_vgpr 72
  .amdhsa_next_free_sgpr 96
  .amdhsa_accum_offset 72
  .amdhsa_group_segment_fixed_size 0
  .amdhsa_kernarg_size 88
  .amdhsa_user_sgpr_count 2
  .amdhsa_user_sgpr_kernarg_segment_ptr 1
  .amdhsa_system_sgpr_workgroup_id_x 1
.end_amdhsa_kernel
'''
if __name__=='__main__':
    import sys
    if len(sys.argv)>1 and sys.argv[1]=='stamp': STAMP=True
    a=Asm()
    gen_k1(a)
    hdr=f'; @launch kernel=egnn_sort_kernel grid=({K1_GRID},1,1) block=(1024,1,1) lds={K1_LDS}\n'
    hdr+='.amdgcn_target "amdgcn-amd-amdhsa--gfx950"\n.text\n'
    txt=hdr+a.text()+'.section .rodata,"a"\n.p2align 6\n'+k1_desc()
    open('k1only.s','w').write(txt)
```
